```python
import torch

def _softmax(x, axis=-1):
    return torch.softmax(x, dim=axis)

def _gelu(x):
    return torch.nn.functional.gelu(x, approximate='tanh')

def _silu(x):
    return torch.nn.functional.silu(x)

def _sigmoid(x):
    return torch.sigmoid(x)

def _layernorm(x, axis=-1, eps=1e-05):
    m = x.mean(dim=axis, keepdim=True)
    v = x.var(dim=axis, keepdim=True, unbiased=False)
    return (x - m) / torch.sqrt(v + eps)

def _scatter_add(tgt, idx, src, axis=0):
    return tgt.clone().index_add_(axis, idx, src)

def _segment_sum(src, seg, n):
    out = torch.zeros((n,) + src.shape[1:], dtype=src.dtype)
    return out.index_add_(0, seg, src)

def _pad(x, pw):
    flat = tuple((v for pair in reversed(pw) for v in pair))
    return torch.nn.functional.pad(x, flat)
kernel_name = 'parallel_sum__memory_aug_recurrent_mem_tr__moe_arch_mod__prompt'

def setup_inputs():

    _w = lambda a: (lambda t: t.to(torch.bfloat16) if t.is_floating_point() else t)(torch.as_tensor(a))

    def _A_setup():
        B, S, Dm = (1, 2048, 640)
        H, Dh = (32, 128)
        M, seg = (8, 32)
        seg = min(seg, S)
        S = S // seg * seg
        return {'x': _w((lambda *s: torch.randn(*s, dtype=torch.bfloat16) * 0.05)(B, S, Dm)), 'mem0': _w((lambda *s: torch.randn(*s, dtype=torch.bfloat16) * 1.6)(B, M, Dm)), 'Wq': _w((lambda *s: torch.randn(*s, dtype=torch.bfloat16) * 0.8)(Dm, H, Dh) * Dm ** (-0.5)), 'Wk': _w((lambda *s: torch.randn(*s, dtype=torch.bfloat16) * 0.8)(Dm, H, Dh) * Dm ** (-0.5)), 'Wv': _w((lambda *s: torch.randn(*s, dtype=torch.bfloat16) * 1.6)(Dm, H, Dh) * Dm ** (-0.5)), 'Wo': _w((lambda *s: torch.randn(*s, dtype=torch.bfloat16) * 1.6)(H, Dh, Dm) * (H * Dh) ** (-0.5)), 'seg_len': seg}
    _A_in = _A_setup()

    def _B_setup():
        B, S, D, F, C = (1, 2048, 640, 1728, 8)
        return {'x': _w((lambda *s: torch.randn(*s, dtype=torch.bfloat16) * 0.05)(B, S, D)), 'w_r': _w((lambda *s: torch.randn(*s, dtype=torch.bfloat16) * 0.05)(D)), 'w_gate': _w((lambda *s: torch.randn(*s, dtype=torch.bfloat16) * 0.05)(D, F)), 'w_up': _w((lambda *s: torch.randn(*s, dtype=torch.bfloat16) * 0.05)(D, F)), 'w_down': _w((lambda *s: torch.randn(*s, dtype=torch.bfloat16) * 0.05)(F, D))}
    _B_in = _B_setup()
    return {'A_x': _A_in['x'], 'A_mem0': _A_in['mem0'], 'A_Wq': _A_in['Wq'], 'A_Wk': _A_in['Wk'], 'A_Wv': _A_in['Wv'], 'A_Wo': _A_in['Wo'], 'A_seg_len': _A_in['seg_len'], 'B_x': _B_in['x'], 'B_w_r': _B_in['w_r'], 'B_w_gate': _B_in['w_gate'], 'B_w_up': _B_in['w_up'], 'B_w_down': _B_in['w_down']}

def reference(A_x, A_mem0, A_Wq, A_Wk, A_Wv, A_Wo, A_seg_len, B_x, B_w_r, B_w_gate, B_w_up, B_w_down):

    def _A_ref(x, mem0, Wq, Wk, Wv, Wo, seg_len):
        B, S, Dm = x.shape
        H, Dh = (Wq.shape[1], Wq.shape[2])
        M = mem0.shape[1]
        scale = Dh ** (-0.5)
        n_seg = S // seg_len
        L = M + seg_len
        idx = torch.arange(L)
        mask = (idx[:, None] < M) | (idx[:, None] >= idx[None, :])
        mem = mem0
        outs = []
        for s in range(n_seg):
            xs = x[:, s * seg_len:(s + 1) * seg_len, :].clone()
            h = torch.concatenate([mem, xs], axis=1)
            q = torch.einsum('btd,dhe->bhte', h, Wq)
            k = torch.einsum('btd,dhe->bhte', h, Wk)
            v = torch.einsum('btd,dhe->bhte', h, Wv)
            scores = torch.einsum('bhqe,bhke->bhqk', q, k) * scale
            scores = torch.where(mask[None, None], scores, -1000000000.0)
            p = _softmax(scores, axis=-1)
            o = torch.einsum('bhqk,bhke->bhqe', p, v)
            o = torch.einsum('bhte,hed->btd', o, Wo)
            mem = o[:, :M, :].clone()
            outs.append(o[:, M:, :])
        return torch.concatenate(outs, axis=1)

    def _B_ref(x, w_r, w_gate, w_up, w_down):
        B, S, D = x.shape
        C = 8
        r = x @ w_r
        idx = torch.argsort(-r, axis=-1)[:, :C]
        idx_e = (lambda x, n, axis: torch.repeat_interleave(x, n, dim=axis))(idx.reshape(B, C, 1), D, axis=2)
        x_sel = (lambda x, i, axis: torch.take_along_dim(x, i, dim=axis))(x, idx_e, axis=1)
        g = _silu(x_sel @ w_gate)
        u = x_sel @ w_up
        y = g * u @ w_down
        r_sel = _sigmoid((lambda x, i, axis: torch.take_along_dim(x, i, dim=axis))(r, idx, axis=1))
        y = y * r_sel.reshape(B, C, 1)
        b_off = (torch.arange(B) * S).reshape(B, 1)
        flat_idx = (idx + b_off).reshape(B * C)
        zero = (x * 0.0).reshape(B * S, D)
        upd = _scatter_add(zero, flat_idx, y.reshape(B * C, D), axis=0)
        return x + upd.reshape(B, S, D)
    x = A_x
    xn = _layernorm(x, axis=-1)
    return x + _A_ref(xn, A_mem0, A_Wq, A_Wk, A_Wv, A_Wo, A_seg_len) + _B_ref(xn, B_w_r, B_w_gate, B_w_up, B_w_down)
```

```python
import re

REG_RE = re.compile(r'\b([vas])(\d+)\b|\b([vas])\[(\d+):(\d+)\]')

def regs_of(op):
    out = set()
    for m in REG_RE.finditer(op):
        if m.group(1):
            out.add((m.group(1), int(m.group(2))))
        else:
            for i in range(int(m.group(4)), int(m.group(5)) + 1):
                out.add((m.group(3), i))
    if re.search(r'\bvcc\b', op): out.add(('vcc', 0))
    if re.search(r'\bexec\b', op): out.add(('exec', 0))
    if re.search(r'\bm0\b', op): out.add(('m0', 0))
    return out

TRANS = ('v_exp_f32', 'v_log_f32', 'v_rcp_f32', 'v_rsq_f32', 'v_sqrt_f32', 'v_sin_f32', 'v_cos_f32')

class Ins:
    __slots__ = ('text', 'mn', 'ops', 'wr', 'rd', 'kind', 'passes', 'srcc', 'nops', 'wide_store_data', 'dpp')
    def __init__(self, text):
        self.text = text
        t = text.split(';')[0].strip()
        self.mn = None; self.wr = set(); self.rd = set(); self.kind = 'other'; self.passes = 0
        self.srcc = set(); self.nops = 1; self.wide_store_data = set(); self.dpp = False
        if not t or t.endswith(':') or t.startswith('.'):
            self.kind = 'label' if t.endswith(':') else 'none'
            self.nops = 0
            return
        parts = t.split(None, 1)
        mn = parts[0]; self.mn = mn
        rest = parts[1] if len(parts) > 1 else ''
        ops = []; depth = 0; cur = ''
        for ch in rest:
            if ch == '[': depth += 1
            if ch == ']': depth -= 1
            if ch == ',' and depth == 0:
                ops.append(cur.strip()); cur = ''
            else:
                cur += ch
        if cur.strip(): ops.append(cur.strip())
        self.ops = ops
        if mn == 's_nop':
            self.kind = 'nop'; self.nops = int(ops[0], 0) + 1; return
        if mn.startswith('v_mfma'):
            self.kind = 'mfma'
            self.wr = regs_of(ops[0]); self.rd = regs_of(ops[1]) | regs_of(ops[2]) | regs_of(ops[3])
            self.srcc = regs_of(ops[3])
            if '32x32' in mn: self.passes = 8
            elif '16x16x4_f32' in mn: self.passes = 8
            else: self.passes = 4

            return
        if mn.startswith('buffer_') or mn.startswith('global_') or mn.startswith('flat_'):
            self.kind = 'vmem'
            if 'store' in mn or 'atomic' in mn and 'sc0' not in rest:
                for o in ops: self.rd |= regs_of(o)
                if 'x4' in mn or 'x3' in mn:
                    d = ops[0] if mn.startswith('buffer_') else ops[1]
                    self.wide_store_data = regs_of(d)
            elif ' lds' in (' ' + rest) or 'load_lds' in mn:
                for o in ops: self.rd |= regs_of(o)
                self.rd.add(('m0', 0))
            elif mn.startswith('buffer_wbl2') or mn.startswith('buffer_inv'):
                pass
            else:
                self.wr = regs_of(ops[0])
                for o in ops[1:]: self.rd |= regs_of(o)
            return
        if mn.startswith('ds_'):
            self.kind = 'ds'
            if 'write' in mn or (mn.startswith('ds_add') and 'rtn' not in mn):
                for o in ops: self.rd |= regs_of(o)
            else:
                self.wr = regs_of(ops[0])
                for o in ops[1:]: self.rd |= regs_of(o)
            return
        if mn.startswith('s_load') or mn.startswith('s_buffer_load') or mn.startswith('s_memtime') or mn.startswith('s_memrealtime') or mn.startswith('s_atomic'):
            self.kind = 'smem'
            self.wr = regs_of(ops[0])
            for o in ops[1:]: self.rd |= regs_of(o)
            return
        if mn.startswith('v_'):
            self.kind = 'valu'
            if 'dpp' in rest or 'row_' in rest or 'quad_perm' in rest or 'wave_' in rest: self.dpp = True
            if mn.startswith('v_cmp'):
                self.wr = regs_of(ops[0])
                for o in ops[1:]: self.rd |= regs_of(o)
                if mn.startswith('v_cmpx'): self.wr.add(('exec', 0))
            elif mn.startswith('v_permlane') and 'swap' in mn:
                self.wr = regs_of(ops[0]) | regs_of(ops[1]); self.rd = set(self.wr)
            elif '_co_' in mn:
                self.wr = regs_of(ops[0]) | regs_of(ops[1])
                for o in ops[2:]: self.rd |= regs_of(o)
            else:
                self.wr = regs_of(ops[0])
                for o in ops[1:]: self.rd |= regs_of(o)
                if mn.startswith('v_fmac') or mn.startswith('v_pk_fmac') or mn.startswith('v_writelane') or mn.startswith('v_dot2c'):
                    self.rd |= regs_of(ops[0])
                if mn.startswith('v_cndmask') and len(ops) == 3: self.rd.add(('vcc', 0))
                if self.dpp: self.rd |= regs_of(ops[0])
            return
        if mn.startswith('s_'):
            self.kind = 'salu'
            if mn.startswith('s_cmp') or mn.startswith('s_cbranch') or mn.startswith('s_branch') or mn in ('s_barrier', 's_endpgm', 's_waitcnt', 's_sleep', 's_setprio'):
                for o in ops: self.rd |= regs_of(o)
            else:
                self.wr = regs_of(ops[0])
                for o in ops[1:]: self.rd |= regs_of(o)
                if 'saveexec' in mn: self.wr.add(('exec', 0))
            return

def need_ws(P, C):
    ws = 0
    vr = lambda s: {r for r in s if r[0] in 'va' and len(r[0]) == 1}
    sr = lambda s: {r for r in s if r[0] == 's' or r[0] == 'vcc'}
    if P.kind == 'valu':
        w = vr(P.wr)
        if C.kind == 'mfma' and w & C.rd: ws = max(ws, 2)
        if C.kind == 'valu':
            if (C.mn.startswith('v_readfirstlane') or C.mn.startswith('v_readlane')) and w & C.rd: ws = max(ws, 1)
            if C.mn.startswith('v_permlane') and w & C.rd: ws = max(ws, 2)
            if C.dpp and w & C.rd: ws = max(ws, 2)
            if P.mn in TRANS and C.mn not in TRANS and w & (C.rd | C.wr): ws = max(ws, 1)
            s = sr(P.wr)
            if s & C.rd:
                ws = max(ws, 2)
                if C.mn.startswith('v_readlane') or C.mn.startswith('v_writelane') or C.mn.startswith('v_div_fmas'): ws = max(ws, 4)
            if ('exec', 0) in P.wr:
                ws = max(ws, 5)
        if C.kind == 'vmem' and sr(P.wr) & C.rd: ws = max(ws, 5)
        if C.kind == 'mfma' and ('exec', 0) in P.wr: ws = max(ws, 4)
    if P.kind == 'mfma':
        p = P.passes
        if C.kind == 'mfma':
            if P.wr & C.srcc:
                if P.wr == C.srcc and C.passes == p: ws = max(ws, 0)
                else: ws = max(ws, p + 2)
            ab = C.rd - C.srcc
            if P.wr & regs_ab(C): ws = max(ws, p + 4)
        elif C.kind in ('valu', 'vmem', 'ds'):
            if P.wr & (C.rd | C.wr): ws = max(ws, p + 4)
            if C.kind == 'valu' and P.srcc & C.wr: ws = max(ws, p - 1)
    if P.kind == 'vmem' and P.wide_store_data:
        if C.kind == 'valu' and P.wide_store_data & C.wr: ws = max(ws, 2)
        elif P.wide_store_data & C.wr: ws = max(ws, 1)
    if P.kind == 'salu' and ('m0', 0) in P.wr and C.kind == 'vmem' and ('m0', 0) in C.rd: ws = max(ws, 1)
    return ws

def regs_ab(C):
    return regs_of(C.ops[1]) | regs_of(C.ops[2])

class Asm:
    def __init__(self):
        self.lines = []
    def __call__(self, s):
        for l in s.split('\n'):
            if l.strip(): self.lines.append(l.strip())
    def label(self, l): self.lines.append(l + ':')
    def finalize(self):
        out = []
        hist = []
        for l in self.lines:
            ins = Ins(l)
            if ins.kind in ('label', 'none'):
                out.append(l); continue
            need = 0; dist = 0
            for P in reversed(hist[-24:]):
                w = need_ws(P, ins)
                if w > dist: need = max(need, w - dist)
                dist += P.nops
                if dist >= 24: break
            while need > 0:
                n = min(need, 16)
                nop = Ins('s_nop %d' % (n - 1))
                out.append('    s_nop %d' % (n - 1)); hist.append(nop); need -= n
            out.append('    ' + l); hist.append(ins)
        return '\n'.join(out) + '\n'

def kernel_text(name, body, vgpr, sgpr=102, accum=None, wgy=False):
    if accum is None: accum = min(256, (vgpr + 3) // 4 * 4)
    t = '.text\n.globl %s\n.p2align 8\n.type %s,@function\n%s:\n' % (name, name, name)
    t += body
    t += '    s_endpgm\n'
    kd = '.section .rodata,"a"\n.p2align 6\n.amdhsa_kernel %s\n' % name
    kd += '  .amdhsa_next_free_vgpr %d\n  .amdhsa_next_free_sgpr %d\n  .amdhsa_accum_offset %d\n' % (vgpr, sgpr, accum)
    kd += '  .amdhsa_group_segment_fixed_size 0\n  .amdhsa_kernarg_size 120\n  .amdhsa_user_sgpr_count 2\n  .amdhsa_user_sgpr_kernarg_segment_ptr 1\n  .amdhsa_system_sgpr_workgroup_id_x 1\n'
    if wgy: kd += '  .amdhsa_system_sgpr_workgroup_id_y 1\n'
    kd += '.end_amdhsa_kernel\n'
    return t, kd
```

```python
import sys, importlib
sys.path.insert(0, 'work')
HDR = open('parallel_sum__memory_aug_recurrent_mem_tr__moe_arch_mod__prompt.s.ref').read().split('; Override')[0]
def build(launches, kernels, out):
    s = HDR
    for (n, g, b, lds) in launches:
        s += '; @launch kernel=%s grid=(%d,1,1) block=(%d,1,1) lds=%d\n' % (n, g, b, lds)
    s += '.amdgcn_target "amdgcn-amd-amdhsa--gfx950"\n'
    for t, kd in kernels: s += t
    for t, kd in kernels: s += kd
    open(out, 'w').write(s)
```

```python
from asmgen import *
from layout import *

N_LN = 128
N_PREP_TASKS = 768 + 160 + 216 + 80
N_PREP = N_PREP_TASKS // 4
FILL_BYTES = WS_END - WS_MEM
N_FILL = FILL_BYTES // 65536
K1_GRID = N_LN + N_PREP + N_FILL

def srd(a, sbase, ka_off, nbytes, tmp='s[%d:%d]'):
    a('s_load_dwordx2 s[%d:%d], s[0:1], %d' % (sbase, sbase + 1, ka_off))
    return

def gen_k1():
    a = Asm()
    a('s_load_dwordx2 s[4:5], s[0:1], %d' % KA_WS)
    a('s_cmp_ge_u32 s2, %d' % K1_GRID)
    a('s_cbranch_scc1 K1_END')
    a('v_lshrrev_b32 v1, 6, v0')
    a('v_and_b32 v2, 63, v0')
    a('v_readfirstlane_b32 s3, v1')
    a('s_mov_b32 s6, %d' % WS_SIZE)
    a('s_mov_b32 s7, 0x00020000')
    a('s_cmp_ge_u32 s2, %d' % N_LN)
    a('s_cbranch_scc1 K1_NOT_LN')
    a('s_load_dwordx2 s[8:9], s[0:1], %d' % KA_X)
    a('s_load_dwordx2 s[12:13], s[0:1], %d' % KA_WR)
    a('s_mov_b32 s10, %d' % (2048 * 1280))
    a('s_mov_b32 s11, 0x00020000')
    a('s_mov_b32 s14, 1280')
    a('s_mov_b32 s15, 0x00020000')
    a('s_lshl_b32 s16, s2, 4')
    a('s_lshl_b32 s17, s3, 2')
    a('s_add_u32 s16, s16, s17')
    a('v_lshrrev_b32 v3, 4, v2')
    a('v_add_u32 v3, s16, v3')
    a('v_and_b32 v4, 15, v2')
    a('v_mul_u32_u24 v5, 1280, v3')
    a('v_lshl_add_u32 v5, v4, 4, v5')
    a('v_lshlrev_b32 v6, 4, v4')
    a('s_waitcnt lgkmcnt(0)')
    for i in range(5):
        a('buffer_load_dwordx4 v[%d:%d], v5, s[8:11], 0 offen offset:%d' % (8 + 4 * i, 11 + 4 * i, 256 * i))
    for i in range(5):
        a('buffer_load_dwordx4 v[%d:%d], v6, s[12:15], 0 offen offset:%d' % (28 + 4 * i, 31 + 4 * i, 256 * i))
    a('s_waitcnt vmcnt(5)')
    for d in range(20):
        a('v_lshlrev_b32 v%d, 16, v%d' % (48 + 2 * d, 8 + d))
        a('v_and_b32 v%d, 0xffff0000, v%d' % (49 + 2 * d, 8 + d))
    a('v_add_f32 v88, v48, v49')
    for e in range(2, 40):
        a('v_add_f32 v88, v88, v%d' % (48 + e))
    def red16(reg, tmp):
        for off in (0x041F, 0x081F, 0x101F, 0x201F):
            a('ds_swizzle_b32 v%d, v%d offset:0x%x' % (tmp, reg, off))
            a('s_waitcnt lgkmcnt(0)')
            a('v_add_f32 v%d, v%d, v%d' % (reg, reg, tmp))
    red16(88, 89)
    a('s_mov_b32 s18, 0x3acccccd')
    a('v_mul_f32 v88, s18, v88')
    a('v_sub_f32 v90, v48, v88')
    a('v_mul_f32 v91, v90, v90')
    for e in range(1, 40):
        a('v_sub_f32 v90, v%d, v88' % (48 + e))
        a('v_fmac_f32 v91, v90, v90')
    red16(91, 89)
    a('v_mul_f32 v91, s18, v91')
    def bfr(reg):
        a('v_cvt_pk_bf16_f32 v%d, v%d, v%d' % (reg, reg, reg))
        a('v_and_b32 v%d, 0xffff0000, v%d' % (reg, reg))
    bfr(88); bfr(91)
    a('v_add_f32 v91, 0x3727c5ac, v91')
    bfr(91)
    a('v_sqrt_f32 v91, v91')
    bfr(91)
    a('v_rcp_f32 v92, v91')
    for e in range(40):
        r = 48 + e
        a('v_sub_f32 v%d, v%d, v88' % (r, r))
    for e in range(0, 40, 2):
        r = 48 + e
        a('v_cvt_pk_bf16_f32 v90, v%d, v%d' % (r, r + 1))
        a('v_lshlrev_b32 v%d, 16, v90' % r)
        a('v_and_b32 v%d, 0xffff0000, v90' % (r + 1))
    for e in range(40):
        r = 48 + e
        a('v_mul_f32 v90, v%d, v92' % r)
        a('v_fma_f32 v93, -v90, v91, v%d' % r)
        a('v_fma_f32 v%d, v93, v92, v90' % r)
    for d in range(20):
        a('v_cvt_pk_bf16_f32 v%d, v%d, v%d' % (8 + d, 48 + 2 * d, 49 + 2 * d))
    for d in range(20):
        a('v_lshlrev_b32 v%d, 16, v%d' % (48 + 2 * d, 8 + d))
        a('v_and_b32 v%d, 0xffff0000, v%d' % (49 + 2 * d, 8 + d))
    for i in range(5):
        a('buffer_store_dwordx4 v[%d:%d], v5, s[4:7], 0 offen offset:%d' % (8 + 4 * i, 11 + 4 * i, 256 * i))
    a('v_lshrrev_b32 v94, 4, v3')
    a('v_mul_u32_u24 v94, 20480, v94')
    a('v_lshrrev_b32 v95, 2, v4')
    a('v_lshl_add_u32 v94, v95, 10, v94')
    a('v_and_b32 v95, 3, v4')
    a('v_lshl_add_u32 v94, v95, 8, v94')
    a('v_and_b32 v95, 15, v3')
    a('v_lshl_add_u32 v94, v95, 4, v94')
    for i in range(5):
        a('s_mov_b32 s19, %d' % (WS_XF + 4096 * i))
        a('buffer_store_dwordx4 v[%d:%d], v94, s[4:7], s19 offen' % (8 + 4 * i, 11 + 4 * i))
    a('s_waitcnt vmcnt(10)')
    a('v_mov_b32 v88, 0')
    for d in range(20):
        a('v_lshlrev_b32 v90, 16, v%d' % (28 + d))
        a('v_and_b32 v93, 0xffff0000, v%d' % (28 + d))
        a('v_fmac_f32 v88, v90, v%d' % (48 + 2 * d))
        a('v_fmac_f32 v88, v93, v%d' % (49 + 2 * d))
    red16(88, 89)
    bfr(88)
    a('v_lshlrev_b32 v94, 2, v3')
    a('v_cmp_eq_u32 vcc, 0, v4')
    a('s_and_saveexec_b64 s[20:21], vcc')
    a('s_mov_b32 s19, %d' % WS_R)
    a('buffer_store_dword v88, v94, s[4:7], s19 offen')
    a('s_mov_b64 exec, s[20:21]')
    a('s_branch K1_END')
    a.label('K1_NOT_LN')
    a('s_cmp_ge_u32 s2, %d' % (N_LN + N_PREP))
    a('s_cbranch_scc1 K1_FILL')
    a('s_sub_u32 s16, s2, %d' % N_LN)
    a('s_lshl_b32 s16, s16, 2')
    a('s_add_u32 s16, s16, s3')
    a('s_cmp_lt_u32 s16, 768')
    a('s_cbranch_scc0 K1_P1')
    a('s_lshr_b32 s17, s16, 8')
    a('s_lshl_b32 s20, s17, 3')
    a('s_add_u32 s20, s20, %d' % KA_WQ)
    a('s_mov_b32 s21, 8192')
    a('s_mov_b32 s22, %d' % (640 * 8192))
    a('s_and_b32 s23, s16, 255')
    a('s_mov_b32 s24, 0')
    a('s_mov_b32 s25, 20')
    a('s_mov_b32 s26, 0')
    a('s_mul_i32 s27, s17, %d' % 5242880)
    a('s_add_u32 s27, s27, %d' % WS_WQF)
    a('s_mov_b32 s28, 20')
    a('s_branch K1_PGO')
    a.label('K1_P1')
    a('s_cmp_lt_u32 s16, 928')
    a('s_cbranch_scc0 K1_P2')
    a('s_sub_u32 s17, s16, 768')
    a('s_mov_b32 s20, %d' % KA_WO)
    a('s_mov_b32 s21, 1280')
    a('s_mov_b32 s22, %d' % (4096 * 1280))
    a('s_lshr_b32 s23, s17, 2')
    a('s_and_b32 s24, s17, 3')
    a('s_lshl_b32 s24, s24, 5')
    a('s_mov_b32 s25, 32')
    a('s_mov_b32 s26, 1')
    a('s_mov_b32 s27, %d' % WS_WOF)
    a('s_mov_b32 s28, 128')
    a('s_branch K1_PGO')
    a.label('K1_P2')
    a('s_cmp_lt_u32 s16, 1144')
    a('s_cbranch_scc0 K1_P3')
    a('s_sub_u32 s17, s16, 928')
    a('s_cmp_ge_u32 s17, 108')
    a('s_cselect_b32 s18, 108, 0')
    a('s_mov_b32 s20, %d' % KA_WG)
    a('s_mov_b32 s27, %d' % WS_WGF)
    a('s_cselect_b32 s19, 8, 0')
    a('s_add_u32 s20, s20, s19')
    a('s_cmp_ge_u32 s17, 108')
    a('s_cselect_b32 s19, %d, 0' % (WS_WUF - WS_WGF))
    a('s_add_u32 s27, s27, s19')
    a('s_sub_u32 s23, s17, s18')
    a('s_mov_b32 s21, 3456')
    a('s_mov_b32 s22, %d' % (640 * 3456))
    a('s_mov_b32 s24, 0')
    a('s_mov_b32 s25, 20')
    a('s_mov_b32 s26, 0')
    a('s_mov_b32 s28, 20')
    a('s_branch K1_PGO')
    a.label('K1_P3')
    a('s_sub_u32 s17, s16, 1144')
    a('s_mov_b32 s20, %d' % KA_WD)
    a('s_mov_b32 s21, 1280')
    a('s_mov_b32 s22, %d' % (1728 * 1280))
    a('s_lshr_b32 s23, s17, 1')
    a('s_and_b32 s24, s17, 1')
    a('s_mul_i32 s24, s24, 27')
    a('s_mov_b32 s25, 27')
    a('s_mov_b32 s26, 0')
    a('s_mov_b32 s27, %d' % WS_WDF)
    a('s_mov_b32 s28, 54')
    a.label('K1_PGO')
    a('s_load_dwordx2 s[8:9], s[0:1], s20')
    a('s_mov_b32 s10, s22')
    a('s_mov_b32 s11, 0x00020000')
    a('v_and_b32 v3, 15, v2')
    a('v_lshlrev_b32 v3, 1, v3')
    a('s_lshl_b32 s17, s23, 5')
    a('v_add_u32 v3, s17, v3')
    a('v_lshrrev_b32 v4, 4, v2')
    a('s_cmp_eq_u32 s26, 1')
    a('s_cselect_b32 s17, 2, 3')
    a('s_cselect_b32 s18, 12, 0')
    a('v_lshlrev_b32 v4, s17, v4')
    for i in range(8):
        a('v_add_u32 v5, %d, v4' % i)
        if i >= 4:
            a('v_add_u32 v5, s18, v5')
        a('v_mul_lo_u32 v5, v5, s21')
        a('v_add_u32 v%d, v5, v3' % (8 + i))
    a('v_lshlrev_b32 v16, 4, v2')
    a('s_mul_i32 s17, s23, s28')
    a('s_add_u32 s17, s17, s24')
    a('s_lshl_b32 s17, s17, 10')
    a('s_add_u32 s27, s27, s17')
    a('s_mul_i32 s29, s24, s21')
    a('s_lshl_b32 s29, s29, 5')
    a('s_lshl_b32 s30, s21, 5')
    a('s_waitcnt lgkmcnt(0)')
    a.label('K1_PLOOP')
    for i in range(8):
        a('buffer_load_ushort v%d, v%d, s[8:11], s29 offen' % (24 + i, 8 + i))
    a('s_waitcnt vmcnt(0)')
    for i in range(4):
        a('v_lshl_or_b32 v%d, v%d, 16, v%d' % (20 + i, 25 + 2 * i, 24 + 2 * i))
    a('buffer_store_dwordx4 v[20:23], v16, s[4:7], s27 offen')
    a('s_add_u32 s27, s27, 1024')
    a('s_add_u32 s29, s29, s30')
    a('s_sub_u32 s25, s25, 1')
    a('s_cmp_lg_u32 s25, 0')
    a('s_cbranch_scc1 K1_PLOOP')
    a('s_branch K1_END')
    a.label('K1_FILL')
    a('s_sub_u32 s16, s2, %d' % (N_LN + N_PREP))
    a('s_lshl_b32 s16, s16, 16')
    a('s_add_u32 s16, s16, %d' % WS_MEM)
    a('v_lshlrev_b32 v3, 4, v0')
    a('v_mov_b32 v4, -1')
    a('v_mov_b32 v5, -1')
    a('v_mov_b32 v6, -1')
    a('v_mov_b32 v7, -1')
    a('s_waitcnt lgkmcnt(0)')
    for i in range(16):
        a('buffer_store_dwordx4 v[4:7], v3, s[4:7], s16 offen')
        if i < 15: a('s_add_u32 s16, s16, 4096')
    a.label('K1_END')
    return kernel_text('k1_kernel', a.finalize(), 96, 40)
```

```python
from asmgen import *
from layout import *

K2A_GRID = 27
K2B_GRID = 10
WS_H = WS_HF

def topk(a, lane='v2'):
    a('v_lshlrev_b32 v3, 2, %s' % lane)
    a('s_mov_b32 s19, %d' % WS_R)
    for i in range(32):
        if i % 16 == 0 and i: a('s_add_u32 s19, s19, 4096')
        a('buffer_load_dword v%d, v3, s[4:7], s19 offen offset:%d' % (64 + i, (i % 16) * 256))
    a('s_waitcnt vmcnt(0)')
    for i in range(32):
        r = 64 + i
        a('v_ashrrev_i32 v4, 31, v%d' % r)
        a('v_or_b32 v4, 0x80000000, v4')
        a('v_xor_b32 v%d, v%d, v4' % (r, r))
        a('v_and_b32 v%d, 0xffff0000, v%d' % (r, r))
        a('v_sub_u32 v4, %d, %s' % (0xffff - i * 64, lane))
        a('v_or_b32 v%d, v%d, v4' % (r, r))
    for t in range(8):
        a('v_max3_u32 v4, v64, v65, v66')
        for r in range(67, 95, 2): a('v_max3_u32 v4, v4, v%d, v%d' % (r, r + 1))
        a('v_max_u32 v4, v4, v95')
        for off in (0x041F, 0x081F, 0x101F, 0x201F, 0x401F):
            a('ds_swizzle_b32 v5, v4 offset:0x%x' % off)
            a('s_waitcnt lgkmcnt(0)')
            a('v_max_u32 v4, v4, v5')
        a('v_mov_b32 v5, v4')
        a('v_permlane32_swap_b32 v4, v5')
        a('v_max_u32 v4, v4, v5')
        a('v_readfirstlane_b32 s%d, v4' % (50 + t))
        for r in range(64, 96):
            a('v_cmp_ne_u32 vcc, v4, v%d' % r)
            a('v_cndmask_b32 v%d, 0, v%d, vcc' % (r, r))
    for t in range(8):
        a('s_and_b32 s%d, s%d, 0xffff0000' % (60 + t, 50 + t))
        a('s_xor_b32 s20, s%d, 0x80000000' % (60 + t))
        a('s_xor_b32 s21, s%d, 0xffff0000' % (60 + t))
        a('s_bitcmp1_b32 s%d, 31' % (60 + t))
        a('s_cselect_b32 s%d, s20, s21' % (60 + t))
        a('s_and_b32 s%d, s%d, 0xffff' % (50 + t, 50 + t))
        a('s_sub_u32 s%d, 0xffff, s%d' % (50 + t, 50 + t))

def bfr(a, reg):
    a('v_cvt_pk_bf16_f32 v%d, v%d, v%d' % (reg, reg, reg))
    a('v_and_b32 v%d, 0xffff0000, v%d' % (reg, reg))

def gen_k2a():
    a = Asm()
    a('s_load_dwordx2 s[4:5], s[0:1], %d' % KA_WS)
    a('s_cmp_ge_u32 s2, %d' % K2A_GRID)
    a('s_cbranch_scc1 K2A_END')
    a('v_lshrrev_b32 v1, 6, v0')
    a('v_readfirstlane_b32 s3, v1')
    a('v_and_b32 v2, 63, v0')
    a('s_mov_b32 s6, %d' % WS_SIZE)
    a('s_mov_b32 s7, 0x00020000')
    a('s_waitcnt lgkmcnt(0)')
    topk(a)
    a('s_or_b32 s19, s2, s3')
    a('s_cmp_lg_u32 s19, 0')
    a('s_cbranch_scc1 K2A_NOIDX')
    for t in range(8):
        a('v_writelane_b32 v4, s%d, %d' % (50 + t, t))
        a('v_writelane_b32 v4, s%d, %d' % (60 + t, 8 + t))
    a('v_lshlrev_b32 v5, 2, v2')
    a('s_mov_b64 exec, 0xffff')
    a('s_mov_b32 s19, %d' % WS_MISC)
    a('buffer_store_dword v4, v5, s[4:7], s19 offen')
    a('s_mov_b64 exec, -1')
    a.label('K2A_NOIDX')
    a('v_and_b32 v4, 7, v2')
    a('v_mov_b32 v5, 0')
    for t in range(8):
        a('s_mul_i32 s19, s%d, 1280' % (50 + t))
        a('v_cmp_eq_u32 vcc, %d, v4' % t)
        a('v_mov_b32 v6, s19')
        a('v_cndmask_b32 v5, v5, v6, vcc')
    a('v_lshrrev_b32 v6, 4, v2')
    a('v_lshl_add_u32 v5, v6, 4, v5')
    a('s_mov_b32 s19, %d' % WS_XN)
    for ks in range(20):
        a('buffer_load_dwordx4 v[%d:%d], v5, s[4:7], s19 offen offset:%d' % (96 + 4 * ks, 99 + 4 * ks, ks * 64))
    a('s_lshl_b32 s20, s2, 2')
    a('s_add_u32 s20, s20, s3')
    a('s_mul_i32 s21, s20, 20480')
    a('v_lshlrev_b32 v1, 4, v2')
    for ks in range(20):
        a('s_add_u32 s22, s21, %d' % (WS_WGF + ks * 1024))
        a('buffer_load_dwordx4 v[%d:%d], v1, s[4:7], s22 offen' % (16 + (ks & 3) * 8, 19 + (ks & 3) * 8))
        a('s_add_u32 s22, s21, %d' % (WS_WUF + ks * 1024))
        a('buffer_load_dwordx4 v[%d:%d], v1, s[4:7], s22 offen' % (20 + (ks & 3) * 8, 23 + (ks & 3) * 8))
        a('s_waitcnt vmcnt(0)')
        C0 = '0' if ks == 0 else 'v[8:11]'; C1 = '0' if ks == 0 else 'v[12:15]'
        a('v_mfma_f32_16x16x32_bf16 v[8:11], v[%d:%d], v[%d:%d], %s' % (96 + 4 * ks, 99 + 4 * ks, 16 + (ks & 3) * 8, 19 + (ks & 3) * 8, C0))
        a('v_mfma_f32_16x16x32_bf16 v[12:15], v[%d:%d], v[%d:%d], %s' % (96 + 4 * ks, 99 + 4 * ks, 20 + (ks & 3) * 8, 23 + (ks & 3) * 8, C1))
    a('s_mov_b32 s19, 0xbfb8aa3b')
    for i in range(4):
        g = 8 + i; u = 12 + i
        bfr(a, g); bfr(a, u)
        a('v_mul_f32 v16, s19, v%d' % g)
        a('v_exp_f32 v16, v16')
        a('v_add_f32 v16, 1.0, v16')
        a('v_rcp_f32 v16, v16')
        a('v_mul_f32 v%d, v%d, v16' % (g, g))
        bfr(a, g)
        a('v_mul_f32 v%d, v%d, v%d' % (g, g, u))
        a('v_cvt_pk_bf16_f32 v%d, v%d, v%d' % (g, g, g))
    a('v_lshrrev_b32 v4, 4, v2')
    a('v_mul_u32_u24 v4, %d, v4' % (4 * 3456))
    a('v_and_b32 v5, 15, v2')
    a('v_lshl_add_u32 v4, v5, 1, v4')
    a('s_lshl_b32 s21, s20, 5')
    a('s_add_u32 s21, s21, %d' % WS_H)
    a('s_mov_b64 exec, 0xffffffff')
    for i in range(4):
        a('s_add_u32 s22, s21, %d' % (i * 3456))
        a('buffer_store_short v%d, v4, s[4:7], s22 offen' % (8 + i))
    a('s_mov_b64 exec, -1')
    a.label('K2A_END')
    return kernel_text('k2a_kernel', a.finalize(), 176, 72)

def gen_k2b():
    a = Asm()
    a('s_load_dwordx2 s[4:5], s[0:1], %d' % KA_WS)
    a('s_cmp_ge_u32 s2, %d' % K2B_GRID)
    a('s_cbranch_scc1 K2B_END')
    a('v_lshrrev_b32 v1, 6, v0')
    a('v_readfirstlane_b32 s3, v1')
    a('v_and_b32 v2, 63, v0')
    a('s_mov_b32 s6, %d' % WS_SIZE)
    a('s_mov_b32 s7, 0x00020000')
    a('v_lshlrev_b32 v1, 4, v2')
    a('v_and_b32 v4, 7, v2')
    a('v_mul_u32_u24 v4, 3456, v4')
    a('v_lshrrev_b32 v5, 4, v2')
    a('v_lshl_add_u32 v4, v5, 4, v4')
    a('s_lshl_b32 s20, s2, 2')
    a('s_add_u32 s20, s20, s3')
    a('s_mul_i32 s21, s20, %d' % (54 * 1024))
    a('s_add_u32 s21, s21, %d' % WS_WDF)
    a('s_mov_b32 s23, %d' % WS_H)
    a('s_waitcnt lgkmcnt(0)')
    a('v_lshlrev_b32 v6, 4, v5')
    a('s_mov_b32 s19, %d' % (WS_MISC + 32))
    a('buffer_load_dwordx4 v[24:27], v6, s[4:7], s19 offen')
    for ks in range(54):
        b = 16 + (ks & 1) * 16
        a('buffer_load_dwordx4 v[%d:%d], v4, s[4:7], s23 offen offset:%d' % (b + 16, b + 19, ks * 64))
        a('s_add_u32 s22, s21, %d' % (ks * 1024))
        a('buffer_load_dwordx4 v[%d:%d], v1, s[4:7], s22 offen' % (b + 20, b + 23))
        a('s_waitcnt vmcnt(0)')
        a('v_mfma_f32_16x16x32_bf16 v[8:11], v[%d:%d], v[%d:%d], %s' % (b + 16, b + 19, b + 20, b + 23, '0' if ks == 0 else 'v[8:11]'))
    a('s_mov_b32 s19, 0xbfb8aa3b')
    for i in range(4):
        y = 8 + i
        bfr(a, y)
        a('v_mul_f32 v16, s19, v%d' % (24 + i))
        a('v_exp_f32 v16, v16')
        a('v_add_f32 v16, 1.0, v16')
        a('v_rcp_f32 v16, v16')
        bfr(a, 16)
        a('v_mul_f32 v%d, v%d, v16' % (y, y))
        bfr(a, y)
    a('v_mul_u32_u24 v4, %d, v5' % (4 * 2560))
    a('v_and_b32 v6, 15, v2')
    a('v_lshl_add_u32 v4, v6, 2, v4')
    a('s_lshl_b32 s21, s20, 6')
    a('s_add_u32 s21, s21, %d' % WS_Y)
    a('s_mov_b64 exec, 0xffffffff')
    for i in range(4):
        a('s_add_u32 s22, s21, %d' % (i * 2560))
        a('buffer_store_dword v%d, v4, s[4:7], s22 offen' % (8 + i))
    a('s_mov_b64 exec, -1')
    a.label('K2B_END')
    return kernel_text('k2b_kernel', a.finalize(), 64, 40)
```

```python
from asmgen import *
from layout import *

K3_GRID = 1536
K3_LDS = 65536

def gen_k3():
    a = Asm()
    a('s_load_dwordx2 s[4:5], s[0:1], %d' % KA_WS)
    a('s_cmp_ge_u32 s2, %d' % K3_GRID)
    a('s_cbranch_scc1 K3_END')
    a('v_lshrrev_b32 v1, 6, v0')
    a('v_and_b32 v2, 63, v0')
    a('v_readfirstlane_b32 s3, v1')
    a('s_mov_b32 s6, %d' % WS_SIZE)
    a('s_mov_b32 s7, 0x00020000')
    a('s_and_b32 s16, s2, 7')
    a('s_lshr_b32 s17, s2, 3')
    a('s_and_b32 s18, s17, 15')
    a('s_lshr_b32 s17, s17, 4')
    a('s_lshl_b32 s17, s17, 3')
    a('s_add_u32 s19, s17, s16')
    a('v_lshlrev_b32 v3, 4, v2')
    a('s_cmp_lt_u32 s3, 2')
    a('s_cselect_b32 s20, s18, s19')
    a('s_cselect_b32 s21, 0, 2')
    a('s_sub_u32 s21, s3, s21')
    a('s_lshl_b32 s20, s20, 3')
    a('s_lshl_b32 s21, s21, 2')
    a('s_add_u32 s20, s20, s21')
    a('s_mul_i32 s20, s20, 20480')
    a('s_mov_b32 s22, %d' % WS_XF)
    a('s_mov_b32 s23, %d' % WS_WQF)
    a('s_cmp_lt_u32 s3, 2')
    a('s_cselect_b32 s22, s22, s23')
    a('s_add_u32 s20, s20, s22')
    a('s_lshl_b32 s21, s3, 12')
    a('s_lshr_b32 s24, s3, 1')
    a('s_and_b32 s25, s3, 1')
    a('s_lshl_b32 s26, s24, 12')
    a('v_add_u32 v4, s26, v3')
    a('s_lshl_b32 s26, s25, 12')
    a('s_add_u32 s26, s26, 8192')
    a('v_add_u32 v5, s26, v3')
    for r in range(64, 128):
        a('v_mov_b32 v%d, 0' % r)
    a('s_waitcnt lgkmcnt(0)')
    def issue(ks):
        slot = ks & 3
        for f in range(4):
            a('s_add_u32 s27, s20, %d' % (f * 20480 + ks * 1024))
            a('s_add_u32 m0, s21, %d' % (slot * 16384 + f * 1024))
            a('buffer_load_dwordx4 v3, s[4:7], s27 offen lds')
    for ks in range(3): issue(ks)
    a('s_cmp_ge_u32 s19, 64')
    a('s_cbranch_scc1 K3_VPATH')
    def mainloop(vpath):
        for ks in range(20):
            rem = min(2, 19 - ks)
            a('s_waitcnt vmcnt(%d)' % (4 * rem))
            a('s_barrier')
            if ks + 3 < 20: issue(ks + 3)
            slot = (ks & 3) * 16384
            for j in range(4):
                a('ds_read_b128 v[%d:%d], v4 offset:%d' % (32 + 4 * j, 35 + 4 * j, slot + j * 1024))
            for i in range(4):
                a('ds_read_b128 v[%d:%d], v5 offset:%d' % (48 + 4 * i, 51 + 4 * i, slot + i * 1024))
            for i in range(4):
                a('s_waitcnt lgkmcnt(%d)' % (3 - i))
                for j in range(4):
                    acc = 64 + (i * 4 + j) * 4
                    X = 'v[%d:%d]' % (32 + 4 * j, 35 + 4 * j); W = 'v[%d:%d]' % (48 + 4 * i, 51 + 4 * i)
                    if vpath: a('v_mfma_f32_16x16x32_bf16 v[%d:%d], %s, %s, v[%d:%d]' % (acc, acc + 3, X, W, acc, acc + 3))
                    else:     a('v_mfma_f32_16x16x32_bf16 v[%d:%d], %s, %s, v[%d:%d]' % (acc, acc + 3, W, X, acc, acc + 3))
    mainloop(False)
    a('s_and_b32 s27, s19, 31')
    a('s_cmp_lt_u32 s19, 32')
    a('s_mov_b32 s28, %d' % WS_KF)
    a('s_cselect_b32 s28, %d, s28' % WS_QF)
    a('s_lshl_b32 s29, s18, 3')
    a('s_lshl_b32 s30, s24, 2')
    a('s_add_u32 s29, s29, s30')
    a('s_lshl_b32 s29, s29, 5')
    a('s_add_u32 s29, s29, s27')
    a('s_lshl_b32 s29, s29, 2')
    a('s_lshl_b32 s30, s25, 1')
    a('s_add_u32 s29, s29, s30')
    a('s_lshl_b32 s29, s29, 10')
    a('s_add_u32 s28, s28, s29')
    for j in range(4):
        for c2 in range(2):
            d = 32 + ((j * 2 + c2) & 3) * 4
            A0 = 64 + ((2 * c2) * 4 + j) * 4; A1 = 64 + ((2 * c2 + 1) * 4 + j) * 4
            a('v_cvt_pk_bf16_f32 v%d, v%d, v%d' % (d, A0, A0 + 1))
            a('v_cvt_pk_bf16_f32 v%d, v%d, v%d' % (d + 1, A0 + 2, A0 + 3))
            a('v_cvt_pk_bf16_f32 v%d, v%d, v%d' % (d + 2, A1, A1 + 1))
            a('v_cvt_pk_bf16_f32 v%d, v%d, v%d' % (d + 3, A1 + 2, A1 + 3))
            a('s_add_u32 s29, s28, %d' % (j * 131072 + c2 * 1024))
            a('buffer_store_dwordx4 v[%d:%d], v3, s[4:7], s29 offen' % (d, d + 3))
    a('s_branch K3_END')
    a.label('K3_VPATH')
    mainloop(True)
    a('s_and_b32 s27, s19, 31')
    a('s_lshl_b32 s29, s18, 2')
    a('s_lshl_b32 s30, s24, 1')
    a('s_add_u32 s29, s29, s30')
    a('s_lshl_b32 s29, s29, 5')
    a('s_add_u32 s29, s29, s27')
    a('s_lshl_b32 s29, s29, 3')
    a('s_lshl_b32 s30, s25, 2')
    a('s_add_u32 s29, s29, s30')
    a('s_lshl_b32 s29, s29, 10')
    a('s_add_u32 s28, s29, %d' % WS_VF)
    for sp in range(2):
        for i in range(4):
            d = 32 + ((sp * 4 + i) & 3) * 4
            A0 = 64 + (i * 4 + 2 * sp) * 4; A1 = 64 + (i * 4 + 2 * sp + 1) * 4
            a('v_cvt_pk_bf16_f32 v%d, v%d, v%d' % (d, A0, A0 + 1))
            a('v_cvt_pk_bf16_f32 v%d, v%d, v%d' % (d + 1, A0 + 2, A0 + 3))
            a('v_cvt_pk_bf16_f32 v%d, v%d, v%d' % (d + 2, A1, A1 + 1))
            a('v_cvt_pk_bf16_f32 v%d, v%d, v%d' % (d + 3, A1 + 2, A1 + 3))
            a('s_add_u32 s29, s28, %d' % (sp * 262144 + i * 1024))
            a('buffer_store_dwordx4 v[%d:%d], v3, s[4:7], s29 offen' % (d, d + 3))
    a.label('K3_END')
    return kernel_text('k3_kernel', a.finalize(), 128, 40)
```

```python
from asmgen import *
from layout import *

K4_GRID = 256
L_MEMF = 0
L_SX = 20480
L_PX = 32768
L_WO = 53248
L_WV1 = 73728
K4_LDS = 155648
SPIN_MAX = 1 << 16

def wreg(m, t, ks):
    if m == 0:
        b = (t * 20 + ks) * 4; return 'a[%d:%d]' % (b, b + 3)
    if m == 1:
        b = 160 + (t * 20 + ks) * 4
        if b < 256: return 'a[%d:%d]' % (b, b + 3)
        b = 192 + (b - 256); return 'v[%d:%d]' % (b, b + 3)
    b = 112 + ks * 4; return 'v[%d:%d]' % (b, b + 3)

def gen_k4(nsteps=64):
    a = Asm()
    a('s_load_dwordx2 s[4:5], s[0:1], %d' % KA_WS)
    a('s_load_dwordx2 s[8:9], s[0:1], %d' % KA_MEM0)
    a('s_cmp_ge_u32 s2, %d' % K4_GRID)
    a('s_cbranch_scc1 K4_END')
    a('v_lshrrev_b32 v1, 6, v0')
    a('v_readfirstlane_b32 s3, v1')
    a('v_and_b32 v2, 63, v0')
    a('s_mov_b32 s6, %d' % WS_SIZE)
    a('s_mov_b32 s7, 0x00020000')
    a('s_mov_b32 s10, 10240')
    a('s_mov_b32 s11, 0x00020000')
    a('s_lshr_b32 s16, s2, 6')
    a('s_lshl_b32 s16, s16, 3')
    a('s_and_b32 s17, s2, 7')
    a('s_add_u32 s16, s16, s17')
    a('s_lshr_b32 s17, s2, 3')
    a('s_and_b32 s17, s17, 7')
    a('v_lshlrev_b32 v1, 4, v2')
    a('v_lshlrev_b32 v3, 4, v0')
    a('v_mov_b32 v12, 0'); a('v_mov_b32 v13, 0'); a('v_mov_b32 v14, 0'); a('v_mov_b32 v15, 0')
    for i in range(5):
        a('ds_write_b128 v3, v[12:15] offset:%d' % (L_MEMF + i * 4096))
    for i in range(3):
        a('v_add_u32 v12, %d, v0' % (256 * i))
        a('s_mov_b32 s18, 52429')
        a('v_mul_lo_u32 v13, v12, s18')
        a('v_lshrrev_b32 v13, 22, v13')
        a('v_mul_u32_u24 v14, 80, v13')
        a('v_sub_u32 v14, v12, v14')
        a('v_lshrrev_b32 v15, 2, v14')
        a('v_and_b32 v14, 3, v14')
        a('v_lshlrev_b32 v15, 10, v15')
        a('v_lshl_add_u32 v15, v14, 8, v15')
        a('v_lshl_add_u32 v15, v13, 4, v15')
        a('v_add_u32 v%d, %d, v15' % (6 + i, L_MEMF))
        a('v_lshlrev_b32 v%d, 4, v12' % (3 + i))
    a('v_cmp_gt_u32 vcc, 128, v0')
    a('v_mov_b32 v12, 0x7ffffff0')
    a('v_cndmask_b32 v5, v12, v5, vcc')
    a('v_mov_b32 v12, %d' % (L_PX))
    a('v_lshl_add_u32 v12, v0, 4, v12')
    a('v_cndmask_b32 v8, v12, v8, vcc')
    a('s_waitcnt lgkmcnt(0)')
    a('s_lshl_b32 s20, s16, 3')
    a('s_lshl_b32 s21, s3, 1')
    a('s_add_u32 s20, s20, s21')
    a('s_mul_i32 s20, s20, 20480')
    a('s_add_u32 s20, s20, %d' % WS_WQF)
    cnt = 0
    for m in range(2):
        for t in range(2):
            for ks in range(20):
                a('s_add_u32 s21, s20, %d' % (m * 5242880 + t * 20480 + ks * 1024))
                a('buffer_load_dwordx4 %s, v1, s[4:7], s21 offen' % wreg(m, t, ks))
    for ks in range(20):
        a('s_add_u32 s21, s20, %d' % (2 * 5242880 + ks * 1024))
        a('buffer_load_dwordx4 %s, v1, s[4:7], s21 offen' % wreg(2, 0, ks))
    a('s_mul_i32 s22, s3, 20480')
    for ks in range(20):
        a('s_add_u32 s21, s20, %d' % (2 * 5242880 + 20480 + ks * 1024))
        a('s_add_u32 m0, s22, %d' % (L_WV1 + ks * 1024))
        a('buffer_load_dwordx4 v1, s[4:7], s21 offen lds')
    a('s_mul_i32 s23, s17, 5')
    a('s_lshl_b32 s23, s23, 7')
    a('s_lshl_b32 s24, s16, 2')
    a('s_add_u32 s23, s23, s24')
    a('s_add_u32 s23, s23, s3')
    a('s_lshl_b32 s23, s23, 10')
    a('s_add_u32 s23, s23, %d' % WS_WOF)
    a('s_mul_i32 s22, s3, 5120')
    for t in range(5):
        a('s_add_u32 s21, s23, %d' % (t * 131072))
        a('s_add_u32 m0, s22, %d' % (L_WO + t * 1024))
        a('buffer_load_dwordx4 v1, s[4:7], s21 offen lds')
    a('s_mul_i32 s22, s3, 20480')
    a('s_add_u32 s22, s22, %d' % L_WV1)
    a('v_add_u32 v9, s22, v1')
    a('s_mul_i32 s22, s3, 5120')
    a('s_add_u32 s22, s22, %d' % L_WO)
    a('v_add_u32 v10, s22, v1')
    a('s_lshl_b32 s25, s16, 2')
    a('s_add_u32 s25, s25, s3')
    a('s_lshl_b32 s25, s25, 10')
    a('s_add_u32 s25, s25, %d' % WS_KF)
    a('s_lshl_b32 s26, s16, 3')
    a('s_lshl_b32 s21, s3, 1')
    a('s_add_u32 s26, s26, s21')
    a('s_lshl_b32 s26, s26, 10')
    a('s_add_u32 s26, s26, %d' % WS_VF)
    def prefetch():
        a('buffer_load_dwordx4 v[64:67], v1, s[4:7], s25 offen')
        a('s_add_u32 s21, s25, 131072')
        a('buffer_load_dwordx4 v[68:71], v1, s[4:7], s21 offen')
        a('buffer_load_dwordx4 v[72:75], v1, s[4:7], s26 offen')
        a('buffer_load_dwordx4 v[76:79], v1, s[4:7], s26 offen offset:1024')
        a('s_add_u32 s25, s25, 262144')
        a('s_add_u32 s26, s26, 262144')
    prefetch()
    a('s_lshl_b32 s27, s16, 2')
    a('s_add_u32 s27, s27, s3')
    a('s_lshl_b32 s27, s27, 10')
    a('s_add_u32 s27, s27, %d' % WS_KMF)
    a('s_lshl_b32 s28, s16, 3')
    a('s_lshl_b32 s21, s3, 1')
    a('s_add_u32 s28, s28, s21')
    a('s_lshl_b32 s28, s28, 9')
    a('s_add_u32 s28, s28, %d' % WS_VMF)
    a('v_lshlrev_b32 v11, 3, v2')
    a('s_mul_i32 s29, s16, 40')
    a('s_mul_i32 s21, s17, 5')
    a('s_add_u32 s29, s29, s21')
    a('s_lshl_b32 s29, s29, 9')
    a('s_add_u32 s29, s29, %d' % WS_PB)
    a('s_lshr_b32 s30, s2, 1')
    a('s_and_b32 s31, s2, 1')
    a('v_lshrrev_b32 v12, 4, v2')
    a('v_mul_u32_u24 v12, %d, v12' % (8 * 40 * 32 * 16))
    a('v_and_b32 v13, 15, v2')
    a('v_lshl_add_u32 v12, v13, 4, v12')
    a('s_lshl_b32 s21, s30, 9')
    a('s_lshl_b32 s22, s31, 8')
    a('s_add_u32 s21, s21, s22')
    a('v_add_u32 v108, s21, v12')
    a('s_mov_b32 s32, %d' % WS_PB)
    a('v_and_b32 v12, 1, v2')
    a('v_lshlrev_b32 v12, 1, v12')
    a('s_lshl_b32 s21, s31, 2')
    a('v_add_u32 v12, s21, v12')
    a('v_mul_u32_u24 v12, 1280, v12')
    a('v_and_b32 v13, 14, v2')
    a('v_lshl_add_u32 v12, v13, 1, v12')
    a('s_lshl_b32 s21, s30, 5')
    a('v_add_u32 v109, s21, v12')
    a('s_mov_b32 s33, %d' % (WS_MEM + 10240))
    a('s_mov_b32 s34, %d' % WS_MEM)
    a('s_mov_b32 s35, 0')
    a('s_mov_b32 s36, 0')
    a('s_mov_b32 s38, 0')
    a('s_mov_b32 s39, -1')
    a('s_mov_b32 s40, 0x3db50000')
    a('s_mov_b32 s41, 0x3fb8aa3b')
    for i in range(3):
        a('buffer_load_dwordx4 v[%d:%d], v%d, s[8:11], 0 offen' % (12 + 4 * i, 15 + 4 * i, 3 + i))
    a('s_waitcnt vmcnt(0)')
    a('s_barrier')
    a('s_branch K4_GOTMEM')
    a.label('K4_STEP')
    a('s_mov_b32 s37, 0')
    a.label('K4_POLL')
    for i in range(3):
        a('buffer_load_dwordx4 v[%d:%d], v%d, s[4:7], s34 offen sc1' % (12 + 4 * i, 15 + 4 * i, 3 + i))
    a('s_waitcnt vmcnt(0)')
    a('v_max3_u32 v24, v12, v13, v14')
    a('v_max3_u32 v24, v24, v15, v16')
    a('v_max3_u32 v24, v24, v17, v18')
    a('v_max3_u32 v24, v24, v19, v20')
    a('v_max3_u32 v24, v24, v21, v22')
    a('v_max_u32 v24, v24, v23')
    a('v_cmp_eq_u32 vcc, -1, v24')
    a('s_cbranch_vccz K4_GOTMEM')
    a('s_add_u32 s37, s37, 1')
    a('s_cmp_lg_u32 s36, 0')
    a('s_cbranch_scc1 K4_GOTMEM')
    a('s_cmp_lt_u32 s37, %d' % SPIN_MAX)
    a('s_cbranch_scc1 K4_POLL')
    a('s_mov_b32 s36, 1')
    a.label('K4_GOTMEM')
    for i in range(3):
        a('ds_write_b128 v%d, v[%d:%d]' % (6 + i, 12 + 4 * i, 15 + 4 * i))
    a('s_waitcnt lgkmcnt(0)')
    a('s_barrier')
    def rd(ks):
        b = 24 + (ks & 1) * 4
        a('ds_read_b128 v[%d:%d], v1 offset:%d' % (b, b + 3, L_MEMF + ks * 1024))
        b = 32 + (ks & 1) * 4
        a('ds_read_b128 v[%d:%d], v9 offset:%d' % (b, b + 3, ks * 1024))
    rd(0)
    for ks in range(20):
        if ks + 1 < 20:
            rd(ks + 1)
            a('s_waitcnt lgkmcnt(2)')
        else:
            a('s_waitcnt lgkmcnt(0)')
        M = 'v[%d:%d]' % (24 + (ks & 1) * 4, 27 + (ks & 1) * 4)
        W1 = 'v[%d:%d]' % (32 + (ks & 1) * 4, 35 + (ks & 1) * 4)
        C = lambda r: ('0' if ks == 0 else 'v[%d:%d]' % (r, r + 3))
        for t in range(2):
            r = 40 + 4 * t; a('v_mfma_f32_16x16x32_bf16 v[%d:%d], %s, %s, %s' % (r, r + 3, wreg(0, t, ks), M, C(r)))
        for t in range(2):
            r = 48 + 4 * t; a('v_mfma_f32_16x16x32_bf16 v[%d:%d], %s, %s, %s' % (r, r + 3, wreg(1, t, ks), M, C(r)))
        a('v_mfma_f32_16x16x32_bf16 v[56:59], %s, %s, %s' % (M, wreg(2, 0, ks), C(56)))
        a('v_mfma_f32_16x16x32_bf16 v[60:63], %s, %s, %s' % (M, W1, C(60)))
    for t in range(5):
        a('ds_read_b128 v[%d:%d], v10 offset:%d' % (12 + 4 * t, 15 + 4 * t, t * 1024))
    for i in range(4): a('v_cvt_pk_bf16_f32 v%d, v%d, v%d' % (80 + i, 40 + 2 * i, 41 + 2 * i))
    for i in range(4): a('v_cvt_pk_bf16_f32 v%d, v%d, v%d' % (84 + i, 48 + 2 * i, 49 + 2 * i))
    for i in range(4): a('v_cvt_pk_bf16_f32 v%d, v%d, v%d' % (88 + i, 56 + 2 * i, 57 + 2 * i))
    a('s_cmp_lg_u32 s17, 0')
    a('s_cbranch_scc1 K4_NOSAVE')
    a('buffer_store_dwordx4 v[84:87], v1, s[4:7], s27 offen')
    a('buffer_store_dwordx2 v[88:89], v11, s[4:7], s28 offen')
    a('buffer_store_dwordx2 v[90:91], v11, s[4:7], s28 offen offset:512')
    a.label('K4_NOSAVE')
    a('s_add_u32 s27, s27, 131072')
    a('s_add_u32 s28, s28, 131072')
    a('s_cmp_eq_u32 s35, %d' % (nsteps - 1))
    a('s_cbranch_scc1 K4_END')
    a('v_mfma_f32_16x16x32_bf16 v[92:95], v[84:87], v[80:83], 0')
    a('v_mfma_f32_16x16x32_bf16 v[96:99], v[64:67], v[80:83], 0')
    a('v_mfma_f32_16x16x32_bf16 v[100:103], v[68:71], v[80:83], 0')
    a('s_mul_i32 s21, s3, 3072')
    a('v_add_u32 v104, s21, v1')
    for t in range(3):
        a('ds_write_b128 v104, v[%d:%d] offset:%d' % (92 + 4 * t, 95 + 4 * t, L_SX + t * 1024))
    a('s_waitcnt lgkmcnt(0)')
    a('s_barrier')
    for t in range(3):
        for w in range(4):
            a('ds_read_b128 v[%d:%d], v1 offset:%d' % (40 + 4 * w, 43 + 4 * w, L_SX + w * 3072 + t * 1024))
        a('s_waitcnt lgkmcnt(0)')
        for i in range(4):
            a('v_add_f32 v%d, v%d, v%d' % (40 + i, 40 + i, 44 + i))
            a('v_add_f32 v%d, v%d, v%d' % (48 + i, 48 + i, 52 + i))
            a('v_add_f32 v%d, v%d, v%d' % (92 + 4 * t + i, 40 + i, 48 + i))
    for r in range(92, 104, 2):
        a('v_cvt_pk_bf16_f32 v104, v%d, v%d' % (r, r + 1))
        a('v_lshlrev_b32 v%d, 16, v104' % r)
        a('v_and_b32 v%d, 0xffff0000, v104' % (r + 1))
        a('v_mul_f32 v%d, s40, v%d' % (r, r))
        a('v_mul_f32 v%d, s40, v%d' % (r + 1, r + 1))
        a('v_cvt_pk_bf16_f32 v104, v%d, v%d' % (r, r + 1))
        a('v_lshlrev_b32 v%d, 16, v104' % r)
        a('v_and_b32 v%d, 0xffff0000, v104' % (r + 1))
    a('v_mov_b32 v104, 0xce6e6b28')
    for r in range(92, 96):
        a('v_cndmask_b32 v%d, v%d, v104, s[38:39]' % (r, r))
    a('v_max3_f32 v104, v92, v93, v94')
    a('v_max3_f32 v104, v104, v95, v96')
    a('v_max3_f32 v104, v104, v97, v98')
    a('v_max3_f32 v104, v104, v99, v100')
    a('v_max3_f32 v104, v104, v101, v102')
    a('v_max_f32 v104, v104, v103')
    def xred(op, r, t):
        a('v_mov_b32 v%d, v%d' % (t, r))
        a('v_permlane32_swap_b32 v%d, v%d' % (r, t))
        a('%s v%d, v%d, v%d' % (op, r, r, t))
        a('v_mov_b32 v%d, v%d' % (t, r))
        a('v_permlane16_swap_b32 v%d, v%d' % (r, t))
        a('%s v%d, v%d, v%d' % (op, r, r, t))
    xred('v_max_f32', 104, 105)
    for r in range(92, 104):
        a('v_sub_f32 v%d, v%d, v104' % (r, r))
        a('v_mul_f32 v%d, s41, v%d' % (r, r))
        a('v_exp_f32 v%d, v%d' % (r, r))
    a('v_add_f32 v104, v92, v93')
    for r in range(94, 104): a('v_add_f32 v104, v104, v%d' % r)
    xred('v_add_f32', 104, 105)
    a('v_rcp_f32 v104, v104')
    for r in range(92, 104): a('v_mul_f32 v%d, v%d, v104' % (r, r))
    a('v_cvt_pk_bf16_f32 v40, v92, v93'); a('v_cvt_pk_bf16_f32 v41, v94, v95')
    for i in range(4): a('v_cvt_pk_bf16_f32 v%d, v%d, v%d' % (44 + i, 96 + 2 * i, 97 + 2 * i))
    for t in range(2):
        a('v_mfma_f32_16x16x32_bf16 v[%d:%d], v[%d:%d], v[44:47], 0' % (48 + 4 * t, 51 + 4 * t, 72 + 4 * t, 75 + 4 * t))
    for t in range(2):
        a('v_mfma_f32_16x16x16_bf16 v[%d:%d], v[%d:%d], v[40:41], v[%d:%d]' % (48 + 4 * t, 51 + 4 * t, 88 + 2 * t, 89 + 2 * t, 48 + 4 * t, 51 + 4 * t))
    for i in range(4): a('v_cvt_pk_bf16_f32 v%d, v%d, v%d' % (56 + i, 48 + 2 * i, 49 + 2 * i))
    prefetch()
    for t in range(5):
        a('v_mfma_f32_16x16x32_bf16 v[%d:%d], v[56:59], v[%d:%d], 0' % (32 + 4 * t, 35 + 4 * t, 12 + 4 * t, 15 + 4 * t))
    a('s_mul_i32 s21, s3, 5120')
    a('v_add_u32 v104, s21, v1')
    for t in range(5):
        a('ds_write_b128 v104, v[%d:%d] offset:%d' % (32 + 4 * t, 35 + 4 * t, L_PX + t * 1024))
    a('s_waitcnt lgkmcnt(0)')
    a('s_barrier')
    a('s_lshl_b32 s21, s3, 10')
    a('v_add_u32 v104, s21, v1')
    a('s_lshl_b32 s22, s3, 9')
    a('s_add_u32 s22, s22, s29')
    def sumtile(addr, off, soff):
        for w in range(4):
            a('ds_read_b128 v[%d:%d], %s offset:%d' % (40 + 4 * w, 43 + 4 * w, addr, L_PX + w * 5120 + off))
        a('s_waitcnt lgkmcnt(0)')
        for i in range(4):
            a('v_add_f32 v%d, v%d, v%d' % (40 + i, 40 + i, 44 + i))
            a('v_add_f32 v%d, v%d, v%d' % (48 + i, 48 + i, 52 + i))
            a('v_add_f32 v%d, v%d, v%d' % (56 + i, 40 + i, 48 + i))
        a('s_mov_b64 exec, 0xffffffff')
        a('buffer_store_dwordx4 v[56:59], v1, s[4:7], %s offen sc1' % soff)
        a('s_mov_b64 exec, -1')
    sumtile('v104', 0, 's22')
    a('s_cmp_lg_u32 s3, 0')
    a('s_cbranch_scc1 K4_NOT0')
    a('s_add_u32 s22, s29, 2048')
    sumtile('v1', 4096, 's22')
    a.label('K4_NOT0')
    a('s_add_u32 s29, s29, 655360')
    a('s_cmp_ge_u32 s2, 80')
    a('s_cbranch_scc1 K4_NORED')
    a('s_cmp_lg_u32 s3, 3')
    a('s_cbranch_scc1 K4_NORED')
    a('s_mov_b32 s37, 0')
    a.label('K4_RPOLL')
    for i in range(8):
        a('s_add_u32 s21, s32, %d' % (i * 20480))
        a('buffer_load_dwordx4 v[%d:%d], v108, s[4:7], s21 offen sc1' % (12 + 4 * i, 15 + 4 * i))
    a('s_waitcnt vmcnt(0)')
    a('v_max3_u32 v104, v12, v13, v14')
    for r in range(15, 43, 2):
        a('v_max3_u32 v104, v104, v%d, v%d' % (r, r + 1))
    a('v_max_u32 v104, v104, v43')
    a('v_cmp_eq_u32 vcc, -1, v104')
    a('s_cbranch_vccz K4_RGOT')
    a('s_add_u32 s37, s37, 1')
    a('s_cmp_lg_u32 s36, 0')
    a('s_cbranch_scc1 K4_RGOT')
    a('s_cmp_lt_u32 s37, %d' % SPIN_MAX)
    a('s_cbranch_scc1 K4_RPOLL')
    a('s_mov_b32 s36, 1')
    a.label('K4_RGOT')
    for i in range(4):
        for k in range(1, 8):
            a('v_add_f32 v%d, v%d, v%d' % (12 + i, 12 + i, 12 + 4 * k + i))
    for i in range(4): xred('v_add_f32', 12 + i, 104)
    for i in range(4):
        a('v_mov_b32_dpp v%d, v%d quad_perm:[1,0,3,2] row_mask:0xf bank_mask:0xf' % (16 + i, 12 + i))
    a('v_and_b32 v104, 1, v2')
    a('v_cmp_eq_u32 vcc, 0, v104')
    a('v_cndmask_b32 v20, v18, v12, vcc')
    a('v_cndmask_b32 v21, v14, v16, vcc')
    a('v_cndmask_b32 v22, v19, v13, vcc')
    a('v_cndmask_b32 v23, v15, v17, vcc')
    a('v_cvt_pk_bf16_f32 v20, v20, v21')
    a('v_cvt_pk_bf16_f32 v22, v22, v23')
    a('s_mov_b64 exec, 0xffff')
    a('buffer_store_dword v20, v109, s[4:7], s33 offen sc1')
    a('buffer_store_dword v22, v109, s[4:7], s33 offen offset:1280 sc1')
    a('s_mov_b64 exec, -1')
    a.label('K4_NORED')
    a('s_add_u32 s32, s32, 655360')
    a('s_add_u32 s33, s33, 10240')
    a('s_add_u32 s34, s34, 10240')
    a('s_add_u32 s35, s35, 1')
    a('s_nop 7')
    a('s_branch K4_STEP')
    a.label('K4_END')
    return kernel_text('k4_kernel', a.finalize(), 512, 48, accum=256)
```

```python
from asmgen import *
from layout import *

K5A_GRID = 512
K5B_GRID = 160
K5B_LDS = 4 * 12288

def gen_k5a():
    a = Asm()
    a('s_load_dwordx2 s[4:5], s[0:1], %d' % KA_WS)
    a('s_cmp_ge_u32 s2, %d' % K5A_GRID)
    a('s_cbranch_scc1 K5A_END')
    a('v_lshrrev_b32 v1, 6, v0')
    a('v_readfirstlane_b32 s3, v1')
    a('v_and_b32 v2, 63, v0')
    a('s_mov_b32 s6, %d' % WS_SIZE)
    a('s_mov_b32 s7, 0x00020000')
    a('v_lshlrev_b32 v1, 4, v2')
    a('v_lshlrev_b32 v3, 3, v2')
    a('s_lshr_b32 s16, s2, 3')
    a('s_and_b32 s17, s2, 7')
    a('s_lshl_b32 s17, s17, 2')
    a('s_add_u32 s17, s17, s3')
    a('s_lshl_b32 s18, s16, 6')
    a('s_add_u32 s18, s18, s17')
    a('s_lshl_b32 s18, s18, 12')
    a('s_lshl_b32 s19, s16, 5')
    a('s_add_u32 s19, s19, s17')
    a('s_lshl_b32 s20, s19, 12')
    a('s_lshl_b32 s21, s19, 13')
    a('s_waitcnt lgkmcnt(0)')
    for qt in range(2):
        a('s_add_u32 s22, s18, %d' % (WS_QF + qt * 131072))
        for c in range(4):
            r = 16 + (qt * 4 + c) * 4
            a('buffer_load_dwordx4 v[%d:%d], v1, s[4:7], s22 offen offset:%d' % (r, r + 3, c * 1024))
    for kt in range(2):
        a('s_add_u32 s22, s18, %d' % (WS_KF + kt * 131072))
        for c in range(4):
            r = 48 + (kt * 4 + c) * 4
            a('buffer_load_dwordx4 v[%d:%d], v1, s[4:7], s22 offen offset:%d' % (r, r + 3, c * 1024))
    a('s_add_u32 s22, s20, %d' % WS_KMF)
    for c in range(4):
        a('buffer_load_dwordx4 v[%d:%d], v1, s[4:7], s22 offen offset:%d' % (80 + 4 * c, 83 + 4 * c, c * 1024))
    for et in range(8):
        a('s_add_u32 s22, s21, %d' % (WS_VF + et * 1024))
        a('buffer_load_dwordx4 v[%d:%d], v1, s[4:7], s22 offen' % (96 + 4 * et, 99 + 4 * et))
    a('s_add_u32 s22, s20, %d' % WS_VMF)
    for et in range(8):
        a('buffer_load_dwordx2 v[%d:%d], v3, s[4:7], s22 offen offset:%d' % (128 + 2 * et, 129 + 2 * et, et * 512))
    a('v_lshrrev_b32 v4, 4, v2')
    a('v_lshlrev_b32 v4, 2, v4')
    a('v_and_b32 v5, 15, v2')
    for i in range(4):
        a('v_add_u32 v6, %d, v4' % i)
        a('v_cmp_le_u32 s[%d:%d], v6, v5' % (30 + 2 * i, 31 + 2 * i))
    a('s_mov_b32 s38, -1'); a('s_mov_b32 s39, 0')
    a('s_mov_b32 s40, 0x3db50000'); a('s_mov_b32 s41, 0x3fb8aa3b')
    a('s_waitcnt vmcnt(16)')
    for qt in range(2):
        for kt in range(3):
            if qt == 0 and kt == 2: continue
            r = 144 + (qt * 3 + kt) * 4
            for c in range(4):
                K = (80 + 4 * c) if kt == 0 else (48 + ((kt - 1) * 4 + c) * 4)
                Q = 16 + (qt * 4 + c) * 4
                a('v_mfma_f32_16x16x32_bf16 v[%d:%d], v[%d:%d], v[%d:%d], %s' % (r, r + 3, K, K + 3, Q, Q + 3, '0' if c == 0 else 'v[%d:%d]' % (r, r + 3)))
    a('v_mov_b32 v8, 0xce6e6b28')
    def xred(op, r, t):
        a('v_mov_b32 v%d, v%d' % (t, r))
        a('v_permlane32_swap_b32 v%d, v%d' % (r, t))
        a('%s v%d, v%d, v%d' % (op, r, r, t))
        a('v_mov_b32 v%d, v%d' % (t, r))
        a('v_permlane16_swap_b32 v%d, v%d' % (r, t))
        a('%s v%d, v%d, v%d' % (op, r, r, t))
    for qt in range(2):
        base = 144 + qt * 12
        regs = list(range(base, base + (8 if qt == 0 else 12)))
        for r in regs[::2]:
            a('v_cvt_pk_bf16_f32 v9, v%d, v%d' % (r, r + 1))
            a('v_lshlrev_b32 v%d, 16, v9' % r)
            a('v_and_b32 v%d, 0xffff0000, v9' % (r + 1))
            a('v_mul_f32 v%d, s40, v%d' % (r, r))
            a('v_mul_f32 v%d, s40, v%d' % (r + 1, r + 1))
            a('v_cvt_pk_bf16_f32 v9, v%d, v%d' % (r, r + 1))
            a('v_lshlrev_b32 v%d, 16, v9' % r)
            a('v_and_b32 v%d, 0xffff0000, v9' % (r + 1))
        for i in range(4):
            a('v_cndmask_b32 v%d, v8, v%d, s[38:39]' % (base + i, base + i))
        dt = base + 4 if qt == 0 else base + 8
        for i in range(4):
            a('v_cndmask_b32 v%d, v8, v%d, s[%d:%d]' % (dt + i, dt + i, 30 + 2 * i, 31 + 2 * i))
        a('v_max_f32 v10, v%d, v%d' % (regs[0], regs[1]))
        for r in regs[2::2]: a('v_max3_f32 v10, v10, v%d, v%d' % (r, r + 1))
        xred('v_max_f32', 10, 11)
        for r in regs:
            a('v_sub_f32 v%d, v%d, v10' % (r, r))
            a('v_mul_f32 v%d, s41, v%d' % (r, r))
            a('v_exp_f32 v%d, v%d' % (r, r))
        a('v_add_f32 v10, v%d, v%d' % (regs[0], regs[1]))
        for r in regs[2:]: a('v_add_f32 v10, v10, v%d' % r)
        xred('v_add_f32', 10, 11)
        a('v_rcp_f32 v10, v10')
        for r in regs: a('v_mul_f32 v%d, v%d, v10' % (r, r))
        P = 168 + 8 * qt
        a('v_cvt_pk_bf16_f32 v%d, v%d, v%d' % (P, base, base + 1))
        a('v_cvt_pk_bf16_f32 v%d, v%d, v%d' % (P + 1, base + 2, base + 3))
        a('v_cvt_pk_bf16_f32 v%d, v%d, v%d' % (P + 4, base + 4, base + 5))
        a('v_cvt_pk_bf16_f32 v%d, v%d, v%d' % (P + 5, base + 6, base + 7))
        if qt == 0:
            a('v_mov_b32 v%d, 0' % (P + 6)); a('v_mov_b32 v%d, 0' % (P + 7))
        else:
            a('v_cvt_pk_bf16_f32 v%d, v%d, v%d' % (P + 6, base + 8, base + 9))
            a('v_cvt_pk_bf16_f32 v%d, v%d, v%d' % (P + 7, base + 10, base + 11))
    a('s_waitcnt vmcnt(0)')
    for qt in range(2):
        P = 168 + 8 * qt
        for et in range(8):
            r = 184 + (qt * 8 + et) * 4
            a('v_mfma_f32_16x16x32_bf16 v[%d:%d], v[%d:%d], v[%d:%d], 0' % (r, r + 3, 96 + 4 * et, 99 + 4 * et, P + 4, P + 7))
        for et in range(8):
            r = 184 + (qt * 8 + et) * 4
            a('v_mfma_f32_16x16x16_bf16 v[%d:%d], v[%d:%d], v[%d:%d], v[%d:%d]' % (r, r + 3, 128 + 2 * et, 129 + 2 * et, P, P + 1, r, r + 3))
    a('s_lshl_b32 s22, s16, 8')
    a('s_lshl_b32 s23, s17, 2')
    a('s_add_u32 s22, s22, s23')
    a('s_lshl_b32 s22, s22, 10')
    a('s_add_u32 s22, s22, %d' % WS_OF)
    for qt in range(2):
        for c in range(4):
            d = 16 + (qt * 4 + c) * 4
            r0 = 184 + (qt * 8 + 2 * c) * 4; r1 = r0 + 4
            a('v_cvt_pk_bf16_f32 v%d, v%d, v%d' % (d, r0, r0 + 1))
            a('v_cvt_pk_bf16_f32 v%d, v%d, v%d' % (d + 1, r0 + 2, r0 + 3))
            a('v_cvt_pk_bf16_f32 v%d, v%d, v%d' % (d + 2, r1, r1 + 1))
            a('v_cvt_pk_bf16_f32 v%d, v%d, v%d' % (d + 3, r1 + 2, r1 + 3))
            a('s_add_u32 s23, s22, %d' % (qt * 131072 + c * 1024))
            a('buffer_store_dwordx4 v[%d:%d], v1, s[4:7], s23 offen' % (d, d + 3))
    a.label('K5A_END')
    return kernel_text('k5a_kernel', a.finalize(), 248, 48)

def gen_k5b():
    a = Asm()
    a('s_load_dwordx2 s[4:5], s[0:1], %d' % KA_WS)
    a('s_load_dwordx2 s[8:9], s[0:1], %d' % KA_X)
    a('s_load_dwordx2 s[12:13], s[0:1], %d' % KA_OUT)
    a('s_cmp_ge_u32 s2, %d' % K5B_GRID)
    a('s_cbranch_scc1 K5B_END')
    a('v_lshrrev_b32 v1, 6, v0')
    a('v_and_b32 v2, 63, v0')
    a('v_readfirstlane_b32 s3, v1')
    a('s_mov_b32 s6, %d' % WS_SIZE)
    a('s_mov_b32 s7, 0x00020000')
    a('s_mov_b32 s10, %d' % (2048 * 1280)); a('s_mov_b32 s11, 0x00020000')
    a('s_mov_b32 s14, %d' % (2048 * 1280)); a('s_mov_b32 s15, 0x00020000')
    a('s_mul_i32 s18, s2, 52429')
    a('s_lshr_b32 s18, s18, 18')
    a('s_mul_i32 s19, s18, 5')
    a('s_sub_u32 s19, s2, s19')
    a('v_lshlrev_b32 v3, 4, v2')
    for k in range(3):
        a('s_mul_i32 s23, s3, 3')
        a('s_add_u32 s23, s23, %d' % k)
        a('s_lshl_b32 s24, s18, 2')
        a('s_add_u32 s24, s24, s23')
        a('s_lshl_b32 s25, s19, 3')
        a('s_add_u32 s25, s25, s23')
        a('s_sub_u32 s25, s25, 4')
        a('s_cmp_lt_u32 s23, 4')
        a('s_cselect_b32 s24, s24, s25')
        a('s_mov_b32 s25, %d' % WS_WOF)
        a('s_cselect_b32 s25, %d, s25' % WS_OF)
        a('s_lshl_b32 s24, s24, 17')
        a('s_add_u32 s%d, s24, s25' % (20 + k))
    a('s_mul_i32 s26, s3, 3072')
    a('s_lshr_b32 s27, s3, 1')
    a('s_and_b32 s28, s3, 1')
    a('s_lshl_b32 s23, s27, 11')
    a('v_add_u32 v4, s23, v3')
    a('s_lshl_b32 s23, s28, 12')
    a('s_add_u32 s23, s23, 4096')
    a('v_add_u32 v5, s23, v3')
    for r in range(64, 96): a('v_mov_b32 v%d, 0' % r)
    a('s_waitcnt lgkmcnt(0)')
    def issue(slot):
        for k in range(3):
            a('s_add_u32 m0, s26, %d' % (slot * 12288 + k * 1024))
            a('buffer_load_dwordx4 v3, s[4:7], s%d offen lds' % (20 + k))
            a('s_add_u32 s%d, s%d, 1024' % (20 + k, 20 + k))
    for ks in range(3): issue(ks)
    a('s_mov_b32 s29, 0')
    a.label('K5B_LOOP')
    for u in range(4):
        a('s_waitcnt vmcnt(6)')
        a('s_barrier')
        issue((u + 3) & 3)
        slot = u * 12288
        for j in range(2):
            a('ds_read_b128 v[%d:%d], v4 offset:%d' % (32 + 4 * j, 35 + 4 * j, slot + j * 1024))
        for i in range(4):
            a('ds_read_b128 v[%d:%d], v5 offset:%d' % (40 + 4 * i, 43 + 4 * i, slot + i * 1024))
        for i in range(4):
            a('s_waitcnt lgkmcnt(%d)' % (3 - i))
            for j in range(2):
                acc = 64 + (i * 2 + j) * 4
                a('v_mfma_f32_16x16x32_bf16 v[%d:%d], v[%d:%d], v[%d:%d], v[%d:%d]' % (acc, acc + 3, 40 + 4 * i, 43 + 4 * i, 32 + 4 * j, 35 + 4 * j, acc, acc + 3))
    a('s_add_u32 s29, s29, 1')
    a('s_cmp_lt_u32 s29, 32')
    a('s_cbranch_scc1 K5B_LOOP')
    a('s_waitcnt vmcnt(0)')
    a('s_load_dwordx2 s[16:17], s[0:1], %d' % KA_WS)
    a('s_waitcnt lgkmcnt(0)')
    a('s_add_u32 s16, s16, %d' % WS_MISC)
    a('s_addc_u32 s17, s17, 0')
    a('s_load_dwordx8 s[48:55], s[16:17], 0')
    a('s_waitcnt lgkmcnt(0)')
    a('s_lshl_b32 s23, s18, 6')
    a('s_lshl_b32 s24, s27, 5')
    a('s_add_u32 s23, s23, s24')
    a('v_and_b32 v6, 15, v2')
    a('v_add_u32 v6, s23, v6')
    a('s_lshl_b32 s23, s19, 7')
    a('s_lshl_b32 s24, s28, 6')
    a('s_add_u32 s23, s23, s24')
    a('v_lshrrev_b32 v7, 4, v2')
    a('v_lshlrev_b32 v7, 2, v7')
    a('v_add_u32 v7, s23, v7')
    for j in range(2):
        a('v_add_u32 v8, %d, v6' % (16 * j))
        a('v_mul_u32_u24 v9, 1280, v8')
        a('v_lshl_add_u32 v9, v7, 1, v9')
        a('v_mov_b32 v10, 0x7ffffff0')
        for t in range(8):
            a('v_cmp_eq_u32 vcc, s%d, v8' % (48 + t))
            a('v_mov_b32 v11, %d' % (t * 2560))
            a('v_cndmask_b32 v10, v10, v11, vcc')
        a('v_lshl_add_u32 v10, v7, 2, v10')
        a('s_mov_b32 s23, %d' % WS_XN)
        a('s_mov_b32 s24, %d' % WS_Y)
        for i in range(4):
            a('buffer_load_dwordx2 v[%d:%d], v9, s[8:11], 0 offen offset:%d' % (32 + 2 * i, 33 + 2 * i, 32 * i))
            a('buffer_load_dwordx2 v[%d:%d], v9, s[4:7], s23 offen offset:%d' % (40 + 2 * i, 41 + 2 * i, 32 * i))
            a('buffer_load_dwordx4 v[%d:%d], v10, s[4:7], s24 offen offset:%d' % (48 + 4 * i, 51 + 4 * i, 64 * i))
        a('s_waitcnt vmcnt(0)')
        for i in range(4):
            acc = 64 + (i * 2 + j) * 4
            for e in range(4):
                src = 32 + 2 * i + e // 2; srn = 40 + 2 * i + e // 2
                if e & 1:
                    a('v_and_b32 v12, 0xffff0000, v%d' % src); a('v_and_b32 v13, 0xffff0000, v%d' % srn)
                else:
                    a('v_lshlrev_b32 v12, 16, v%d' % src); a('v_lshlrev_b32 v13, 16, v%d' % srn)
                r = acc + e
                a('v_cvt_pk_bf16_f32 v%d, v%d, v%d' % (r, r, r)); a('v_and_b32 v%d, 0xffff0000, v%d' % (r, r))
                a('v_add_f32 v%d, v12, v%d' % (r, r))
                a('v_cvt_pk_bf16_f32 v%d, v%d, v%d' % (r, r, r)); a('v_and_b32 v%d, 0xffff0000, v%d' % (r, r))
                a('v_add_f32 v13, v13, v%d' % (48 + 4 * i + e))
                a('v_cvt_pk_bf16_f32 v13, v13, v13'); a('v_and_b32 v13, 0xffff0000, v13')
                a('v_add_f32 v%d, v%d, v13' % (r, r))
            a('v_cvt_pk_bf16_f32 v14, v%d, v%d' % (acc, acc + 1))
            a('v_cvt_pk_bf16_f32 v15, v%d, v%d' % (acc + 2, acc + 3))
            a('buffer_store_dwordx2 v[14:15], v9, s[12:15], 0 offen offset:%d' % (32 * i))
    a.label('K5B_END')
    return kernel_text('k5b_kernel', a.finalize(), 96, 64)
```

```python
WS_XN   = 0x0000000
WS_XF   = 0x0280000
WS_R    = 0x0500000
WS_MISC = 0x0510000
WS_HF   = 0x0520000
WS_Y    = 0x0540000
WS_WQF  = 0x0600000
WS_WOF  = 0x1500000
WS_WGF  = 0x1A00000
WS_WUF  = 0x1C80000
WS_WDF  = 0x1F00000
WS_QF   = 0x2200000
WS_KF   = 0x3200000
WS_VF   = 0x4200000
WS_OF   = 0x5200000
WS_KMF  = 0x6200000
WS_VMF  = 0x6A00000
WS_MEM  = 0x7200000
WS_PB   = 0x7400000
WS_END  = 0x9C00000
WS_SIZE = 268435456
KA_X=0; KA_MEM0=8; KA_WQ=16; KA_WK=24; KA_WV=32; KA_WO=40; KA_SEG=48; KA_BX=56; KA_WR=64; KA_WG=72; KA_WU=80; KA_WD=88; KA_OUT=96; KA_DBG=104; KA_WS=112
```

```python
import sys; sys.path.insert(0, 'work')
from build import build
import k1, k2, k3, k4, k5
L = [('k1_kernel', k1.K1_GRID, 256, 16384),
     ('k3_kernel', k3.K3_GRID, 256, k3.K3_LDS), ('k4_kernel', k4.K4_GRID, 256, k4.K4_LDS),
     ('k5a_kernel', k5.K5A_GRID, 256, 0), ('k5b_kernel', k5.K5B_GRID, 256, k5.K5B_LDS)]
out = sys.argv[1] if len(sys.argv) > 1 else 't.s'
build(L, [k1.gen_k1(), k3.gen_k3(), k4.gen_k4(), k5.gen_k5a(), k5.gen_k5b()], out)
```

```python
import re

REG_RE = re.compile(r'\b([vas])(\d+)\b|\b([vas])\[(\d+):(\d+)\]')

def regs_of(op):
    out = set()
    for m in REG_RE.finditer(op):
        if m.group(1):
            out.add((m.group(1), int(m.group(2))))
        else:
            for i in range(int(m.group(4)), int(m.group(5)) + 1):
                out.add((m.group(3), i))
    if re.search(r'\bvcc\b', op): out.add(('vcc', 0))
    if re.search(r'\bexec\b', op): out.add(('exec', 0))
    if re.search(r'\bm0\b', op): out.add(('m0', 0))
    return out

TRANS = ('v_exp_f32', 'v_log_f32', 'v_rcp_f32', 'v_rsq_f32', 'v_sqrt_f32', 'v_sin_f32', 'v_cos_f32')

class Ins:
    __slots__ = ('text', 'mn', 'ops', 'wr', 'rd', 'kind', 'passes', 'srcc', 'nops', 'wide_store_data', 'dpp')
    def __init__(self, text):
        self.text = text
        t = text.split(';')[0].strip()
        self.mn = None; self.wr = set(); self.rd = set(); self.kind = 'other'; self.passes = 0
        self.srcc = set(); self.nops = 1; self.wide_store_data = set(); self.dpp = False
        if not t or t.endswith(':') or t.startswith('.'):
            self.kind = 'label' if t.endswith(':') else 'none'
            self.nops = 0
            return
        parts = t.split(None, 1)
        mn = parts[0]; self.mn = mn
        rest = parts[1] if len(parts) > 1 else ''
        ops = []; depth = 0; cur = ''
        for ch in rest:
            if ch == '[': depth += 1
            if ch == ']': depth -= 1
            if ch == ',' and depth == 0:
                ops.append(cur.strip()); cur = ''
            else:
                cur += ch
        if cur.strip(): ops.append(cur.strip())
        self.ops = ops
        if mn == 's_nop':
            self.kind = 'nop'; self.nops = int(ops[0], 0) + 1; return
        if mn.startswith('v_mfma'):
            self.kind = 'mfma'
            self.wr = regs_of(ops[0]); self.rd = regs_of(ops[1]) | regs_of(ops[2]) | regs_of(ops[3])
            self.srcc = regs_of(ops[3])
            if '32x32' in mn: self.passes = 8
            elif '16x16x4_f32' in mn: self.passes = 8
            else: self.passes = 4

            return
        if mn.startswith('buffer_') or mn.startswith('global_') or mn.startswith('flat_'):
            self.kind = 'vmem'
            if 'store' in mn or 'atomic' in mn and 'sc0' not in rest:
                for o in ops: self.rd |= regs_of(o)
                if 'x4' in mn or 'x3' in mn:
                    d = ops[0] if mn.startswith('buffer_') else ops[1]
                    self.wide_store_data = regs_of(d)
            elif ' lds' in (' ' + rest) or 'load_lds' in mn:
                for o in ops: self.rd |= regs_of(o)
                self.rd.add(('m0', 0))
            elif mn.startswith('buffer_wbl2') or mn.startswith('buffer_inv'):
                pass
            else:
                self.wr = regs_of(ops[0])
                for o in ops[1:]: self.rd |= regs_of(o)
            return
        if mn.startswith('ds_'):
            self.kind = 'ds'
            if 'write' in mn or (mn.startswith('ds_add') and 'rtn' not in mn):
                for o in ops: self.rd |= regs_of(o)
            else:
                self.wr = regs_of(ops[0])
                for o in ops[1:]: self.rd |= regs_of(o)
            return
        if mn.startswith('s_load') or mn.startswith('s_buffer_load') or mn.startswith('s_memtime') or mn.startswith('s_memrealtime') or mn.startswith('s_atomic'):
            self.kind = 'smem'
            self.wr = regs_of(ops[0])
            for o in ops[1:]: self.rd |= regs_of(o)
            return
        if mn.startswith('v_'):
            self.kind = 'valu'
            if 'dpp' in rest or 'row_' in rest or 'quad_perm' in rest or 'wave_' in rest: self.dpp = True
            if mn.startswith('v_cmp'):
                self.wr = regs_of(ops[0])
                for o in ops[1:]: self.rd |= regs_of(o)
                if mn.startswith('v_cmpx'): self.wr.add(('exec', 0))
            elif mn.startswith('v_permlane') and 'swap' in mn:
                self.wr = regs_of(ops[0]) | regs_of(ops[1]); self.rd = set(self.wr)
            elif '_co_' in mn:
                self.wr = regs_of(ops[0]) | regs_of(ops[1])
                for o in ops[2:]: self.rd |= regs_of(o)
            else:
                self.wr = regs_of(ops[0])
                for o in ops[1:]: self.rd |= regs_of(o)
                if mn.startswith('v_fmac') or mn.startswith('v_pk_fmac') or mn.startswith('v_writelane') or mn.startswith('v_dot2c'):
                    self.rd |= regs_of(ops[0])
                if mn.startswith('v_cndmask') and len(ops) == 3: self.rd.add(('vcc', 0))
                if self.dpp: self.rd |= regs_of(ops[0])
            return
        if mn.startswith('s_'):
            self.kind = 'salu'
            if mn.startswith('s_cmp') or mn.startswith('s_cbranch') or mn.startswith('s_branch') or mn in ('s_barrier', 's_endpgm', 's_waitcnt', 's_sleep', 's_setprio'):
                for o in ops: self.rd |= regs_of(o)
            else:
                self.wr = regs_of(ops[0])
                for o in ops[1:]: self.rd |= regs_of(o)
                if 'saveexec' in mn: self.wr.add(('exec', 0))
            return

def need_ws(P, C):
    ws = 0
    vr = lambda s: {r for r in s if r[0] in 'va' and len(r[0]) == 1}
    sr = lambda s: {r for r in s if r[0] == 's' or r[0] == 'vcc'}
    if P.kind == 'valu':
        w = vr(P.wr)
        if C.kind == 'mfma' and w & C.rd: ws = max(ws, 2)
        if C.kind == 'valu':
            if (C.mn.startswith('v_readfirstlane') or C.mn.startswith('v_readlane')) and w & C.rd: ws = max(ws, 1)
            if C.mn.startswith('v_permlane') and w & C.rd: ws = max(ws, 2)
            if C.dpp and w & C.rd: ws = max(ws, 2)
            if P.mn in TRANS and C.mn not in TRANS and w & (C.rd | C.wr): ws = max(ws, 1)
            s = sr(P.wr)
            if s & C.rd:
                ws = max(ws, 2)
                if C.mn.startswith('v_readlane') or C.mn.startswith('v_writelane') or C.mn.startswith('v_div_fmas'): ws = max(ws, 4)
            if ('exec', 0) in P.wr:
                ws = max(ws, 5)
        if C.kind == 'vmem' and sr(P.wr) & C.rd: ws = max(ws, 5)
        if C.kind == 'mfma' and ('exec', 0) in P.wr: ws = max(ws, 4)
    if P.kind == 'mfma':
        p = P.passes
        if C.kind == 'mfma':
            if P.wr & C.srcc:
                if P.wr == C.srcc and C.passes == p: ws = max(ws, 0)
                else: ws = max(ws, p + 2)
            ab = C.rd - C.srcc
            if P.wr & regs_ab(C): ws = max(ws, p + 4)
        elif C.kind in ('valu', 'vmem', 'ds'):
            if P.wr & (C.rd | C.wr): ws = max(ws, p + 4)
            if C.kind == 'valu' and P.srcc & C.wr: ws = max(ws, p - 1)
    if P.kind == 'vmem' and P.wide_store_data:
        if C.kind == 'valu' and P.wide_store_data & C.wr: ws = max(ws, 2)
        elif P.wide_store_data & C.wr: ws = max(ws, 1)
    if P.kind == 'salu' and ('m0', 0) in P.wr and C.kind == 'vmem' and ('m0', 0) in C.rd: ws = max(ws, 1)
    return ws

def regs_ab(C):
    return regs_of(C.ops[1]) | regs_of(C.ops[2])

class Asm:
    def __init__(self, auto_lgkm=False):
        self.lines = []
        self.auto_lgkm = auto_lgkm
    def __call__(self, s):
        for l in s.split('\n'):
            if l.strip(): self.lines.append(l.strip())
    def label(self, l): self.lines.append(l + ':')
    def finalize(self):
        out = []
        hist = []
        pend = []
        for l in self.lines:
            ins = Ins(l)
            if ins.kind in ('label', 'none'):
                out.append(l)
                if ins.kind == 'label': pend = []
                continue
            if self.auto_lgkm:
                if ins.mn == 's_waitcnt':
                    mm = re.search(r'lgkmcnt\((\d+)\)', l)
                    if mm:
                        n = int(mm.group(1)); pend = pend[len(pend) - n:] if n else []
                elif ins.kind == 'smem':
                    pass
                else:
                    touch = ins.rd | ins.wr
                    last = -1
                    for qi, dst in enumerate(pend):
                        if dst & touch: last = qi
                    if last >= 0:
                        n = len(pend) - 1 - last
                        w = 's_waitcnt lgkmcnt(%d)' % min(n, 15)
                        out.append('    ' + w); hist.append(Ins(w))
                        pend = pend[len(pend) - n:] if n else []
                    if ins.kind == 'ds': pend.append(set(ins.wr))
            need = 0; dist = 0
            for P in reversed(hist[-24:]):
                w = need_ws(P, ins)
                if w > dist: need = max(need, w - dist)
                dist += P.nops
                if dist >= 24: break
            while need > 0:
                n = min(need, 16)
                nop = Ins('s_nop %d' % (n - 1))
                out.append('    s_nop %d' % (n - 1)); hist.append(nop); need -= n
            out.append('    ' + l); hist.append(ins)
        return '\n'.join(out) + '\n'

def kernel_text(name, body, vgpr, sgpr=102, accum=None, wgy=False):
    if accum is None: accum = min(256, (vgpr + 3) // 4 * 4)
    t = '.text\n.globl %s\n.p2align 8\n.type %s,@function\n%s:\n' % (name, name, name)
    t += body
    t += '    s_endpgm\n'
    kd = '.section .rodata,"a"\n.p2align 6\n.amdhsa_kernel %s\n' % name
    kd += '  .amdhsa_next_free_vgpr %d\n  .amdhsa_next_free_sgpr %d\n  .amdhsa_accum_offset %d\n' % (vgpr, sgpr, accum)
    kd += '  .amdhsa_group_segment_fixed_size 0\n  .amdhsa_kernarg_size 120\n  .amdhsa_user_sgpr_count 2\n  .amdhsa_user_sgpr_kernarg_segment_ptr 1\n  .amdhsa_system_sgpr_workgroup_id_x 1\n'
    if wgy: kd += '  .amdhsa_system_sgpr_workgroup_id_y 1\n'
    kd += '.end_amdhsa_kernel\n'
    return t, kd
```

```python
from asmgen import *
from layout import *

N_LN = 128
N_PREP_TASKS = 768 + 320 + 216 + 92
N_PREP = N_PREP_TASKS // 4
FILL_BYTES = WS_ZEND - WS_ACC
N_FILL = FILL_BYTES // 65536
K1_GRID = N_LN + N_PREP + N_FILL

def srd(a, sbase, ka_off, nbytes, tmp='s[%d:%d]'):
    a('s_load_dwordx2 s[%d:%d], s[0:1], %d' % (sbase, sbase + 1, ka_off))
    return

def gen_k1():
    a = Asm()
    a('s_load_dwordx2 s[4:5], s[0:1], %d' % KA_WS)
    a('s_cmp_ge_u32 s2, %d' % K1_GRID)
    a('s_cbranch_scc1 K1_END')
    a('v_lshrrev_b32 v1, 6, v0')
    a('v_and_b32 v2, 63, v0')
    a('v_readfirstlane_b32 s3, v1')
    a('s_mov_b32 s6, %d' % WS_SIZE)
    a('s_mov_b32 s7, 0x00020000')
    a('s_cmp_ge_u32 s2, %d' % N_LN)
    a('s_cbranch_scc1 K1_NOT_LN')
    a('s_load_dwordx2 s[8:9], s[0:1], %d' % KA_X)
    a('s_load_dwordx2 s[12:13], s[0:1], %d' % KA_WR)
    a('s_mov_b32 s10, %d' % (2048 * 1280))
    a('s_mov_b32 s11, 0x00020000')
    a('s_mov_b32 s14, 1280')
    a('s_mov_b32 s15, 0x00020000')
    a('s_lshl_b32 s16, s2, 4')
    a('s_lshl_b32 s17, s3, 2')
    a('s_add_u32 s16, s16, s17')
    a('v_lshrrev_b32 v3, 4, v2')
    a('v_add_u32 v3, s16, v3')
    a('v_and_b32 v4, 15, v2')
    a('v_mul_u32_u24 v5, 1280, v3')
    a('v_lshl_add_u32 v5, v4, 4, v5')
    a('v_lshlrev_b32 v6, 4, v4')
    a('s_waitcnt lgkmcnt(0)')
    for i in range(5):
        a('buffer_load_dwordx4 v[%d:%d], v5, s[8:11], 0 offen offset:%d' % (8 + 4 * i, 11 + 4 * i, 256 * i))
    for i in range(5):
        a('buffer_load_dwordx4 v[%d:%d], v6, s[12:15], 0 offen offset:%d' % (28 + 4 * i, 31 + 4 * i, 256 * i))
    a('s_waitcnt vmcnt(5)')
    for d in range(20):
        a('v_lshlrev_b32 v%d, 16, v%d' % (48 + 2 * d, 8 + d))
        a('v_and_b32 v%d, 0xffff0000, v%d' % (49 + 2 * d, 8 + d))
    a('v_add_f32 v88, v48, v49')
    for e in range(2, 40):
        a('v_add_f32 v88, v88, v%d' % (48 + e))
    def red16(reg, tmp):
        for off in (0x041F, 0x081F, 0x101F, 0x201F):
            a('ds_swizzle_b32 v%d, v%d offset:0x%x' % (tmp, reg, off))
            a('s_waitcnt lgkmcnt(0)')
            a('v_add_f32 v%d, v%d, v%d' % (reg, reg, tmp))
    red16(88, 89)
    a('s_mov_b32 s18, 0x3acccccd')
    a('v_mul_f32 v88, s18, v88')
    a('v_sub_f32 v90, v48, v88')
    a('v_mul_f32 v91, v90, v90')
    for e in range(1, 40):
        a('v_sub_f32 v90, v%d, v88' % (48 + e))
        a('v_fmac_f32 v91, v90, v90')
    red16(91, 89)
    a('v_mul_f32 v91, s18, v91')
    def bfr(reg):
        a('v_cvt_pk_bf16_f32 v%d, v%d, v%d' % (reg, reg, reg))
        a('v_and_b32 v%d, 0xffff0000, v%d' % (reg, reg))
    bfr(88); bfr(91)
    a('v_add_f32 v91, 0x3727c5ac, v91')
    bfr(91)
    a('v_sqrt_f32 v91, v91')
    bfr(91)
    a('v_rcp_f32 v92, v91')
    for e in range(40):
        r = 48 + e
        a('v_sub_f32 v%d, v%d, v88' % (r, r))
    for e in range(0, 40, 2):
        r = 48 + e
        a('v_cvt_pk_bf16_f32 v90, v%d, v%d' % (r, r + 1))
        a('v_lshlrev_b32 v%d, 16, v90' % r)
        a('v_and_b32 v%d, 0xffff0000, v90' % (r + 1))
    for e in range(40):
        r = 48 + e
        a('v_mul_f32 v90, v%d, v92' % r)
        a('v_fma_f32 v93, -v90, v91, v%d' % r)
        a('v_fma_f32 v%d, v93, v92, v90' % r)
    for d in range(20):
        a('v_cvt_pk_bf16_f32 v%d, v%d, v%d' % (8 + d, 48 + 2 * d, 49 + 2 * d))
    for d in range(20):
        a('v_lshlrev_b32 v%d, 16, v%d' % (48 + 2 * d, 8 + d))
        a('v_and_b32 v%d, 0xffff0000, v%d' % (49 + 2 * d, 8 + d))
    for i in range(5):
        a('buffer_store_dwordx4 v[%d:%d], v5, s[4:7], 0 offen offset:%d' % (8 + 4 * i, 11 + 4 * i, 256 * i))
    a('v_lshrrev_b32 v94, 4, v3')
    a('v_mul_u32_u24 v94, 20480, v94')
    a('v_lshrrev_b32 v95, 2, v4')
    a('v_lshl_add_u32 v94, v95, 10, v94')
    a('v_and_b32 v95, 3, v4')
    a('v_lshl_add_u32 v94, v95, 8, v94')
    a('v_and_b32 v95, 15, v3')
    a('v_lshl_add_u32 v94, v95, 4, v94')
    for i in range(5):
        a('s_mov_b32 s19, %d' % (WS_XF + 4096 * i))
        a('buffer_store_dwordx4 v[%d:%d], v94, s[4:7], s19 offen' % (8 + 4 * i, 11 + 4 * i))
    a('s_waitcnt vmcnt(10)')
    a('v_mov_b32 v88, 0')
    for d in range(20):
        a('v_lshlrev_b32 v90, 16, v%d' % (28 + d))
        a('v_and_b32 v93, 0xffff0000, v%d' % (28 + d))
        a('v_fmac_f32 v88, v90, v%d' % (48 + 2 * d))
        a('v_fmac_f32 v88, v93, v%d' % (49 + 2 * d))
    red16(88, 89)
    bfr(88)
    a('v_lshlrev_b32 v94, 2, v3')
    a('v_cmp_eq_u32 vcc, 0, v4')
    a('s_and_saveexec_b64 s[20:21], vcc')
    a('s_mov_b32 s19, %d' % WS_R)
    a('buffer_store_dword v88, v94, s[4:7], s19 offen')
    a('s_mov_b64 exec, s[20:21]')
    a('s_branch K1_END')
    a.label('K1_NOT_LN')
    a('s_cmp_ge_u32 s2, %d' % (N_LN + N_PREP))
    a('s_cbranch_scc1 K1_FILL')
    a('s_sub_u32 s16, s2, %d' % N_LN)
    a('s_lshl_b32 s16, s16, 2')
    a('s_add_u32 s16, s16, s3')
    a('s_cmp_lt_u32 s16, 768')
    a('s_cbranch_scc0 K1_P1')
    a('s_lshr_b32 s17, s16, 8')
    a('s_lshl_b32 s20, s17, 3')
    a('s_add_u32 s20, s20, %d' % KA_WQ)
    a('s_mov_b32 s21, 8192')
    a('s_mov_b32 s22, %d' % (640 * 8192))
    a('s_lshr_b32 s23, s16, 2')
    a('s_and_b32 s23, s23, 63')
    a('s_and_b32 s24, s16, 3')
    a('s_mul_i32 s24, s24, 5')
    a('s_mov_b32 s25, 5')
    a('s_mov_b32 s26, 0')
    a('s_mul_i32 s27, s17, %d' % 5242880)
    a('s_add_u32 s27, s27, %d' % WS_WQF)
    a('s_mov_b32 s28, 20')
    a('s_branch K1_PGO')
    a.label('K1_P1')
    a('s_cmp_lt_u32 s16, 1088')
    a('s_cbranch_scc0 K1_P2')
    a('s_sub_u32 s17, s16, 768')
    a('s_mov_b32 s20, %d' % KA_WO)
    a('s_mov_b32 s21, 1280')
    a('s_mov_b32 s22, %d' % (4096 * 1280))
    a('s_lshr_b32 s23, s17, 5')
    a('s_and_b32 s24, s17, 31')
    a('s_lshl_b32 s24, s24, 2')
    a('s_mov_b32 s25, 4')
    a('s_mov_b32 s26, 1')
    a('s_mov_b32 s27, %d' % WS_WOF)
    a('s_mov_b32 s28, 128')
    a('s_branch K1_PGO')
    a.label('K1_P2')
    a('s_cmp_lt_u32 s16, 1304')
    a('s_cbranch_scc0 K1_P3')
    a('s_sub_u32 s17, s16, 1088')
    a('s_and_b32 s24, s17, 3')
    a('s_mul_i32 s24, s24, 5')
    a('s_lshr_b32 s17, s17, 2')
    a('s_cmp_ge_u32 s17, 27')
    a('s_cselect_b32 s18, 27, 0')
    a('s_mov_b32 s20, %d' % KA_WG)
    a('s_mov_b32 s27, %d' % WS_WGF)
    a('s_cselect_b32 s19, 8, 0')
    a('s_add_u32 s20, s20, s19')
    a('s_cmp_ge_u32 s17, 27')
    a('s_cselect_b32 s19, %d, 0' % (WS_WUF - WS_WGF))
    a('s_add_u32 s27, s27, s19')
    a('s_sub_u32 s23, s17, s18')
    a('s_mov_b32 s21, 3456')
    a('s_mov_b32 s22, %d' % (640 * 3456))
    a('s_mov_b32 s25, 5')
    a('s_mov_b32 s26, 0')
    a('s_mov_b32 s28, 20')
    a('s_branch K1_PGO')
    a.label('K1_P3')
    a('s_sub_u32 s17, s16, 1304')
    a('s_cmp_ge_u32 s17, 90')
    a('s_cbranch_scc1 K1_END')
    a('s_mov_b32 s20, %d' % KA_WD)
    a('s_mov_b32 s21, 1280')
    a('s_mov_b32 s22, %d' % (1728 * 1280))
    a('s_mul_i32 s23, s17, 7282')
    a('s_lshr_b32 s23, s23, 16')
    a('s_mul_i32 s24, s23, 9')
    a('s_sub_u32 s24, s17, s24')
    a('s_mul_i32 s24, s24, 6')
    a('s_mov_b32 s25, 6')
    a('s_mov_b32 s26, 0')
    a('s_mov_b32 s27, %d' % WS_WDF)
    a('s_mov_b32 s28, 54')
    a.label('K1_PGO')
    a('s_load_dwordx2 s[8:9], s[0:1], s20')
    a('s_mov_b32 s10, s22')
    a('s_mov_b32 s11, 0x00020000')
    a('v_lshrrev_b32 v3, 3, v2')
    a('v_mul_lo_u32 v3, v3, s21')
    a('v_and_b32 v4, 7, v2')
    a('v_lshl_add_u32 v3, v4, 4, v3')
    a('s_lshl_b32 s17, s23, 7')
    a('v_add_u32 v3, s17, v3')
    a('s_lshl_b32 s31, s21, 3')
    a('s_lshl_b32 s17, s3, 12')
    a('v_lshlrev_b32 v5, 4, v2')
    a('v_add_u32 v5, s17, v5')
    a('v_lshrrev_b32 v6, 4, v2')
    a('s_cmp_eq_u32 s26, 1')
    a('s_cselect_b32 s18, 2, 3')
    a('s_cselect_b32 s19, 16, 4')
    a('s_lshl_b32 s19, s19, 7')
    a('v_lshlrev_b32 v6, s18, v6')
    a('v_and_b32 v7, 15, v2')
    a('v_lshrrev_b32 v8, 2, v7')
    a('v_add_u32 v6, v6, v8')
    a('v_lshlrev_b32 v6, 7, v6')
    a('v_and_b32 v7, 3, v7')
    a('v_lshl_add_u32 v6, v7, 3, v6')
    a('v_add_u32 v6, s17, v6')
    a('v_add_u32 v7, s19, v6')
    a('v_lshlrev_b32 v16, 4, v2')
    a('s_lshl_b32 s17, s23, 2')
    a('s_mul_i32 s17, s17, s28')
    a('s_add_u32 s17, s17, s24')
    a('s_lshl_b32 s17, s17, 10')
    a('s_add_u32 s27, s27, s17')
    a('s_lshl_b32 s28, s28, 10')
    a('s_mul_i32 s29, s24, s21')
    a('s_lshl_b32 s29, s29, 5')
    a('s_waitcnt lgkmcnt(0)')
    def gl():
        for q in range(4):
            a('buffer_load_dwordx4 v[%d:%d], v3, s[8:11], s29 offen' % (20 + 4 * q, 23 + 4 * q))
            a('s_add_u32 s29, s29, s31')
    gl()
    a.label('K1_PLOOP')
    a('s_waitcnt vmcnt(0)')
    for q in range(4):
        a('ds_write_b128 v5, v[%d:%d] offset:%d' % (20 + 4 * q, 23 + 4 * q, q * 1024))
    a('s_waitcnt lgkmcnt(0)')
    a('s_sub_u32 s25, s25, 1')
    a('s_cmp_eq_u32 s25, 0')
    a('s_cbranch_scc1 K1_PNOGL')
    gl()
    a.label('K1_PNOGL')
    for f in range(4):
        a('ds_read_b64_tr_b16 v[%d:%d], v6 offset:%d' % (40 + 4 * f, 41 + 4 * f, f * 32))
        a('ds_read_b64_tr_b16 v[%d:%d], v7 offset:%d' % (42 + 4 * f, 43 + 4 * f, f * 32))
    a('s_waitcnt lgkmcnt(0)')
    a('s_mov_b32 s17, s27')
    for f in range(4):
        a('buffer_store_dwordx4 v[%d:%d], v16, s[4:7], s17 offen' % (40 + 4 * f, 43 + 4 * f))
        a('s_add_u32 s17, s17, s28')
    a('s_add_u32 s27, s27, 1024')
    a('s_cmp_lg_u32 s25, 0')
    a('s_cbranch_scc1 K1_PLOOP')
    a('s_branch K1_END')
    a.label('K1_FILL')
    a('s_sub_u32 s16, s2, %d' % (N_LN + N_PREP))
    a('s_lshl_b32 s16, s16, 16')
    a('s_add_u32 s16, s16, %d' % WS_ACC)
    a('v_lshlrev_b32 v3, 4, v0')
    a('v_mov_b32 v4, 0')
    a('v_mov_b32 v5, 0')
    a('v_mov_b32 v6, 0')
    a('v_mov_b32 v7, 0')
    a('s_waitcnt lgkmcnt(0)')
    for i in range(16):
        a('buffer_store_dwordx4 v[4:7], v3, s[4:7], s16 offen')
        if i < 15: a('s_add_u32 s16, s16, 4096')
    a.label('K1_END')
    return kernel_text('k1_kernel', a.finalize(), 96, 40)
```

```python
from asmgen import *
from layout import *

K2A_GRID = 27
K2B_GRID = 10
WS_H = WS_HF

def topk(a, lane='v2'):
    a('v_lshlrev_b32 v3, 2, %s' % lane)
    a('s_mov_b32 s19, %d' % WS_R)
    for i in range(32):
        if i % 16 == 0 and i: a('s_add_u32 s19, s19, 4096')
        a('buffer_load_dword v%d, v3, s[4:7], s19 offen offset:%d' % (64 + i, (i % 16) * 256))
    a('s_waitcnt vmcnt(0)')
    for i in range(32):
        r = 64 + i
        a('v_ashrrev_i32 v4, 31, v%d' % r)
        a('v_or_b32 v4, 0x80000000, v4')
        a('v_xor_b32 v%d, v%d, v4' % (r, r))
        a('v_and_b32 v%d, 0xffff0000, v%d' % (r, r))
        a('v_sub_u32 v4, %d, %s' % (0xffff - i * 64, lane))
        a('v_or_b32 v%d, v%d, v4' % (r, r))
    for t in range(8):
        a('v_max3_u32 v4, v64, v65, v66')
        for r in range(67, 95, 2): a('v_max3_u32 v4, v4, v%d, v%d' % (r, r + 1))
        a('v_max_u32 v4, v4, v95')
        for off in (0x041F, 0x081F, 0x101F, 0x201F, 0x401F):
            a('ds_swizzle_b32 v5, v4 offset:0x%x' % off)
            a('s_waitcnt lgkmcnt(0)')
            a('v_max_u32 v4, v4, v5')
        a('v_mov_b32 v5, v4')
        a('v_permlane32_swap_b32 v4, v5')
        a('v_max_u32 v4, v4, v5')
        a('v_readfirstlane_b32 s%d, v4' % (50 + t))
        for r in range(64, 96):
            a('v_cmp_ne_u32 vcc, v4, v%d' % r)
            a('v_cndmask_b32 v%d, 0, v%d, vcc' % (r, r))
    for t in range(8):
        a('s_and_b32 s%d, s%d, 0xffff0000' % (60 + t, 50 + t))
        a('s_xor_b32 s20, s%d, 0x80000000' % (60 + t))
        a('s_xor_b32 s21, s%d, 0xffff0000' % (60 + t))
        a('s_bitcmp1_b32 s%d, 31' % (60 + t))
        a('s_cselect_b32 s%d, s20, s21' % (60 + t))
        a('s_and_b32 s%d, s%d, 0xffff' % (50 + t, 50 + t))
        a('s_sub_u32 s%d, 0xffff, s%d' % (50 + t, 50 + t))

def bfr(a, reg):
    a('v_cvt_pk_bf16_f32 v%d, v%d, v%d' % (reg, reg, reg))
    a('v_and_b32 v%d, 0xffff0000, v%d' % (reg, reg))

def body_k2a(a):
    a('v_lshrrev_b32 v1, 6, v0')
    a('v_readfirstlane_b32 s3, v1')
    a('v_and_b32 v2, 63, v0')
    a('s_mov_b32 s6, %d' % WS_SIZE)
    a('s_mov_b32 s7, 0x00020000')
    a('s_waitcnt lgkmcnt(0)')
    topk(a)
    a('s_or_b32 s19, s2, s3')
    a('s_cmp_lg_u32 s19, 0')
    a('s_cbranch_scc1 K2A_NOIDX')
    for t in range(8):
        a('v_writelane_b32 v4, s%d, %d' % (50 + t, t))
        a('v_writelane_b32 v4, s%d, %d' % (60 + t, 8 + t))
    a('v_lshlrev_b32 v5, 2, v2')
    a('s_mov_b64 exec, 0xffff')
    a('s_mov_b32 s19, %d' % WS_MISC)
    a('buffer_store_dword v4, v5, s[4:7], s19 offen')
    a('s_mov_b64 exec, -1')
    a.label('K2A_NOIDX')
    a('v_and_b32 v4, 7, v2')
    a('v_mov_b32 v5, 0')
    for t in range(8):
        a('s_mul_i32 s19, s%d, 1280' % (50 + t))
        a('v_cmp_eq_u32 vcc, %d, v4' % t)
        a('v_mov_b32 v6, s19')
        a('v_cndmask_b32 v5, v5, v6, vcc')
    a('v_lshrrev_b32 v6, 4, v2')
    a('v_lshl_add_u32 v5, v6, 4, v5')
    a('s_mov_b32 s19, %d' % WS_XN)
    for ks in range(20):
        a('buffer_load_dwordx4 v[%d:%d], v5, s[4:7], s19 offen offset:%d' % (96 + 4 * ks, 99 + 4 * ks, ks * 64))
    a('s_lshl_b32 s20, s2, 2')
    a('s_add_u32 s20, s20, s3')
    a('s_mul_i32 s21, s20, 20480')
    a('v_lshlrev_b32 v1, 4, v2')
    for bt in range(2):
        for k in range(10):
            ks = bt * 10 + k
            a('s_add_u32 s22, s21, %d' % (WS_WGF + ks * 1024))
            a('buffer_load_dwordx4 v[%d:%d], v1, s[4:7], s22 offen' % (16 + k * 8, 19 + k * 8))
            a('s_add_u32 s22, s21, %d' % (WS_WUF + ks * 1024))
            a('buffer_load_dwordx4 v[%d:%d], v1, s[4:7], s22 offen' % (20 + k * 8, 23 + k * 8))
        a('s_waitcnt vmcnt(0)')
        for k in range(10):
            ks = bt * 10 + k
            C0 = '0' if ks == 0 else 'v[8:11]'; C1 = '0' if ks == 0 else 'v[12:15]'
            a('v_mfma_f32_16x16x32_bf16 v[8:11], v[%d:%d], v[%d:%d], %s' % (96 + 4 * ks, 99 + 4 * ks, 16 + k * 8, 19 + k * 8, C0))
            a('v_mfma_f32_16x16x32_bf16 v[12:15], v[%d:%d], v[%d:%d], %s' % (96 + 4 * ks, 99 + 4 * ks, 20 + k * 8, 23 + k * 8, C1))
        a('s_nop 7')
    a('s_mov_b32 s19, 0xbfb8aa3b')
    for i in range(4):
        g = 8 + i; u = 12 + i
        bfr(a, g); bfr(a, u)
        a('v_mul_f32 v16, s19, v%d' % g)
        a('v_exp_f32 v16, v16')
        a('v_add_f32 v16, 1.0, v16')
        a('v_rcp_f32 v16, v16')
        a('v_mul_f32 v%d, v%d, v16' % (g, g))
        bfr(a, g)
        a('v_mul_f32 v%d, v%d, v%d' % (g, g, u))
        a('v_cvt_pk_bf16_f32 v%d, v%d, v%d' % (g, g, g))
    a('v_lshrrev_b32 v4, 4, v2')
    a('v_mul_u32_u24 v4, %d, v4' % (4 * 3456))
    a('v_and_b32 v5, 15, v2')
    a('v_lshl_add_u32 v4, v5, 1, v4')
    a('s_lshl_b32 s21, s20, 5')
    a('s_add_u32 s21, s21, %d' % WS_H)
    a('s_mov_b64 exec, 0xffffffff')
    for i in range(4):
        a('s_add_u32 s22, s21, %d' % (i * 3456))
        a('buffer_store_short v%d, v4, s[4:7], s22 offen' % (8 + i))
    a('s_mov_b64 exec, -1')


def body_k2b(a):
    a('v_lshrrev_b32 v1, 6, v0')
    a('v_readfirstlane_b32 s3, v1')
    a('v_and_b32 v2, 63, v0')
    a('s_mov_b32 s6, %d' % WS_SIZE)
    a('s_mov_b32 s7, 0x00020000')
    a('v_lshlrev_b32 v1, 4, v2')
    a('v_and_b32 v4, 7, v2')
    a('v_mul_u32_u24 v4, 3456, v4')
    a('v_lshrrev_b32 v5, 4, v2')
    a('v_lshl_add_u32 v4, v5, 4, v4')
    a('s_lshl_b32 s20, s2, 2')
    a('s_add_u32 s20, s20, s3')
    a('s_mul_i32 s21, s20, %d' % (54 * 1024))
    a('s_add_u32 s21, s21, %d' % WS_WDF)
    a('s_mov_b32 s23, %d' % WS_H)
    a('s_waitcnt lgkmcnt(0)')
    a('v_lshlrev_b32 v6, 4, v5')
    a('s_mov_b32 s19, %d' % (WS_MISC + 32))
    a('buffer_load_dwordx4 v[24:27], v6, s[4:7], s19 offen')
    for bt in range(3):
        for k in range(18):
            ks = bt * 18 + k
            b = 32 + k * 8
            a('buffer_load_dwordx4 v[%d:%d], v4, s[4:7], s23 offen offset:%d' % (b, b + 3, ks * 64))
            a('s_add_u32 s22, s21, %d' % (ks * 1024))
            a('buffer_load_dwordx4 v[%d:%d], v1, s[4:7], s22 offen' % (b + 4, b + 7))
        a('s_waitcnt vmcnt(0)')
        for k in range(18):
            ks = bt * 18 + k
            b = 32 + k * 8
            a('v_mfma_f32_16x16x32_bf16 v[8:11], v[%d:%d], v[%d:%d], %s' % (b, b + 3, b + 4, b + 7, '0' if ks == 0 else 'v[8:11]'))
        a('s_nop 7')
    a('s_mov_b32 s19, 0xbfb8aa3b')
    for i in range(4):
        y = 8 + i
        bfr(a, y)
        a('v_mul_f32 v16, s19, v%d' % (24 + i))
        a('v_exp_f32 v16, v16')
        a('v_add_f32 v16, 1.0, v16')
        a('v_rcp_f32 v16, v16')
        bfr(a, 16)
        a('v_mul_f32 v%d, v%d, v16' % (y, y))
        bfr(a, y)
    a('v_mul_u32_u24 v4, %d, v5' % (4 * 2560))
    a('v_and_b32 v6, 15, v2')
    a('v_lshl_add_u32 v4, v6, 2, v4')
    a('s_lshl_b32 s21, s20, 6')
    a('s_add_u32 s21, s21, %d' % WS_Y)
    a('s_mov_b64 exec, 0xffffffff')
    for i in range(4):
        a('s_add_u32 s22, s21, %d' % (i * 2560))
        a('buffer_store_dword v%d, v4, s[4:7], s22 offen' % (8 + i))
    a('s_mov_b64 exec, -1')
```

```python
from asmgen import *
from layout import *

import k2
K3_NG = 1536
K3_GRID = K3_NG + k2.K2A_GRID
K3_LDS = 65536

def gen_k3():
    a = Asm()
    a('s_load_dwordx2 s[4:5], s[0:1], %d' % KA_WS)
    a('s_cmp_ge_u32 s2, %d' % K3_GRID)
    a('s_cbranch_scc1 K3_END')
    a('s_cmp_lt_u32 s2, %d' % K3_NG)
    a('s_cbranch_scc1 K3_GEMM')
    a('s_sub_u32 s2, s2, %d' % K3_NG)
    k2.body_k2a(a)
    a('s_branch K3_END')
    a.label('K3_GEMM')
    a('v_lshrrev_b32 v1, 6, v0')
    a('v_and_b32 v2, 63, v0')
    a('v_readfirstlane_b32 s3, v1')
    a('s_mov_b32 s6, %d' % WS_SIZE)
    a('s_mov_b32 s7, 0x00020000')
    a('s_and_b32 s16, s2, 7')
    a('s_lshr_b32 s17, s2, 3')
    a('s_and_b32 s18, s17, 15')
    a('s_lshr_b32 s17, s17, 4')
    a('s_lshl_b32 s17, s17, 3')
    a('s_add_u32 s19, s17, s16')
    a('v_lshlrev_b32 v3, 4, v2')
    a('s_cmp_lt_u32 s3, 2')
    a('s_cselect_b32 s20, s18, s19')
    a('s_cselect_b32 s21, 0, 2')
    a('s_sub_u32 s21, s3, s21')
    a('s_lshl_b32 s20, s20, 3')
    a('s_lshl_b32 s21, s21, 2')
    a('s_add_u32 s20, s20, s21')
    a('s_mul_i32 s20, s20, 20480')
    a('s_mov_b32 s22, %d' % WS_XF)
    a('s_mov_b32 s23, %d' % WS_WQF)
    a('s_cmp_lt_u32 s3, 2')
    a('s_cselect_b32 s22, s22, s23')
    a('s_add_u32 s20, s20, s22')
    a('s_lshl_b32 s21, s3, 12')
    a('s_lshr_b32 s24, s3, 1')
    a('s_and_b32 s25, s3, 1')
    a('s_lshl_b32 s26, s24, 12')
    a('v_add_u32 v4, s26, v3')
    a('s_lshl_b32 s26, s25, 12')
    a('s_add_u32 s26, s26, 8192')
    a('v_add_u32 v5, s26, v3')
    for r in range(64, 128):
        a('v_mov_b32 v%d, 0' % r)
    a('s_waitcnt lgkmcnt(0)')
    def issue(ks):
        slot = ks & 3
        for f in range(4):
            a('s_add_u32 s27, s20, %d' % (f * 20480 + ks * 1024))
            a('s_add_u32 m0, s21, %d' % (slot * 16384 + f * 1024))
            a('buffer_load_dwordx4 v3, s[4:7], s27 offen lds')
    for ks in range(3): issue(ks)
    a('s_cmp_ge_u32 s19, 64')
    a('s_cbranch_scc1 K3_VPATH')
    def mainloop(vpath):
        for ks in range(20):
            rem = min(2, 19 - ks)
            a('s_waitcnt vmcnt(%d)' % (4 * rem))
            a('s_barrier')
            if ks + 3 < 20: issue(ks + 3)
            slot = (ks & 3) * 16384
            for j in range(4):
                a('ds_read_b128 v[%d:%d], v4 offset:%d' % (32 + 4 * j, 35 + 4 * j, slot + j * 1024))
            for i in range(4):
                a('ds_read_b128 v[%d:%d], v5 offset:%d' % (48 + 4 * i, 51 + 4 * i, slot + i * 1024))
            for i in range(4):
                a('s_waitcnt lgkmcnt(%d)' % (3 - i))
                for j in range(4):
                    acc = 64 + (i * 4 + j) * 4
                    X = 'v[%d:%d]' % (32 + 4 * j, 35 + 4 * j); W = 'v[%d:%d]' % (48 + 4 * i, 51 + 4 * i)
                    if vpath: a('v_mfma_f32_16x16x32_bf16 v[%d:%d], %s, %s, v[%d:%d]' % (acc, acc + 3, X, W, acc, acc + 3))
                    else:     a('v_mfma_f32_16x16x32_bf16 v[%d:%d], %s, %s, v[%d:%d]' % (acc, acc + 3, W, X, acc, acc + 3))
    mainloop(False)
    a('s_and_b32 s27, s19, 31')
    a('s_cmp_lt_u32 s19, 32')
    a('s_mov_b32 s28, %d' % WS_KF)
    a('s_cselect_b32 s28, %d, s28' % WS_QF)
    a('s_lshl_b32 s29, s18, 3')
    a('s_lshl_b32 s30, s24, 2')
    a('s_add_u32 s29, s29, s30')
    a('s_lshl_b32 s29, s29, 5')
    a('s_add_u32 s29, s29, s27')
    a('s_lshl_b32 s29, s29, 2')
    a('s_lshl_b32 s30, s25, 1')
    a('s_add_u32 s29, s29, s30')
    a('s_lshl_b32 s29, s29, 10')
    a('s_add_u32 s28, s28, s29')
    for j in range(4):
        for c2 in range(2):
            d = 32 + ((j * 2 + c2) & 3) * 4
            A0 = 64 + ((2 * c2) * 4 + j) * 4; A1 = 64 + ((2 * c2 + 1) * 4 + j) * 4
            a('v_cvt_pk_bf16_f32 v%d, v%d, v%d' % (d, A0, A0 + 1))
            a('v_cvt_pk_bf16_f32 v%d, v%d, v%d' % (d + 1, A0 + 2, A0 + 3))
            a('v_cvt_pk_bf16_f32 v%d, v%d, v%d' % (d + 2, A1, A1 + 1))
            a('v_cvt_pk_bf16_f32 v%d, v%d, v%d' % (d + 3, A1 + 2, A1 + 3))
            a('s_add_u32 s29, s28, %d' % (j * 131072 + c2 * 1024))
            a('buffer_store_dwordx4 v[%d:%d], v3, s[4:7], s29 offen' % (d, d + 3))
    a('s_branch K3_END')
    a.label('K3_VPATH')
    mainloop(True)
    a('s_and_b32 s27, s19, 31')
    a('s_lshl_b32 s29, s18, 2')
    a('s_lshl_b32 s30, s24, 1')
    a('s_add_u32 s29, s29, s30')
    a('s_lshl_b32 s29, s29, 5')
    a('s_add_u32 s29, s29, s27')
    a('s_lshl_b32 s29, s29, 3')
    a('s_lshl_b32 s30, s25, 2')
    a('s_add_u32 s29, s29, s30')
    a('s_lshl_b32 s29, s29, 10')
    a('s_add_u32 s28, s29, %d' % WS_VF)
    for sp in range(2):
        for i in range(4):
            d = 32 + ((sp * 4 + i) & 3) * 4
            A0 = 64 + (i * 4 + 2 * sp) * 4; A1 = 64 + (i * 4 + 2 * sp + 1) * 4
            a('v_cvt_pk_bf16_f32 v%d, v%d, v%d' % (d, A0, A0 + 1))
            a('v_cvt_pk_bf16_f32 v%d, v%d, v%d' % (d + 1, A0 + 2, A0 + 3))
            a('v_cvt_pk_bf16_f32 v%d, v%d, v%d' % (d + 2, A1, A1 + 1))
            a('v_cvt_pk_bf16_f32 v%d, v%d, v%d' % (d + 3, A1 + 2, A1 + 3))
            a('s_add_u32 s29, s28, %d' % (sp * 262144 + i * 1024))
            a('buffer_store_dwordx4 v[%d:%d], v3, s[4:7], s29 offen' % (d, d + 3))
    a.label('K3_END')
    return kernel_text('k3_kernel', a.finalize(), 176, 72)
```

```python
from asmgen import *
from layout import *

K4_GRID = 256
L_MEMF = 0
L_SX = 20480
L_PX = 32768
L_WO = 53248
L_WV1 = 73728
K4_LDS = 155648
SPIN_MAX = 1 << 16
WS_DBGT = 0xA000000

def wreg(m, t, ks):
    if m == 0:
        b = (t * 20 + ks) * 4; return 'a[%d:%d]' % (b, b + 3)
    if m == 1:
        b = 160 + (t * 20 + ks) * 4
        if b < 256: return 'a[%d:%d]' % (b, b + 3)
        b = 192 + (b - 256); return 'v[%d:%d]' % (b, b + 3)
    b = 112 + ks * 4; return 'v[%d:%d]' % (b, b + 3)

def interleave(main, side, ratio):
    out = []; si = 0
    for i, m in enumerate(main):
        out.append(m)
        if (i + 1) % ratio == 0 and si < len(side):
            out.extend(side[si]); si += 1
    for g in side[si:]: out.extend(g)
    return out

def gen_k4(nsteps=64, stamps=False, sleep0=26, sleep1=4, pmode=0, cshift=7):
    a = Asm(auto_lgkm=True)
    def stamp(i):
        if not stamps: return
        a('s_memtime s[44:45]')
        a('s_waitcnt lgkmcnt(0)')
        a('v_mov_b32 v110, s44')
        a('s_lshl_b32 s46, s35, 6')
        a('s_add_u32 s46, s46, s47')
        a('s_mov_b64 exec, 1')
        a('buffer_store_dword v110, v111, s[4:7], s46 offen offset:%d' % (i * 4))
        a('s_mov_b64 exec, -1')
    a('s_load_dwordx2 s[4:5], s[0:1], %d' % KA_WS)
    a('s_load_dwordx2 s[8:9], s[0:1], %d' % KA_MEM0)
    a('s_cmp_ge_u32 s2, %d' % K4_GRID)
    a('s_cbranch_scc1 K4_END')
    a('v_lshrrev_b32 v1, 6, v0')
    a('v_readfirstlane_b32 s3, v1')
    a('v_and_b32 v2, 63, v0')
    a('s_mov_b32 s6, %d' % WS_SIZE)
    a('s_mov_b32 s7, 0x00020000')
    a('s_mov_b32 s10, 10240')
    a('s_mov_b32 s11, 0x00020000')
    a('s_lshr_b32 s16, s2, 6')
    a('s_lshl_b32 s16, s16, 3')
    a('s_and_b32 s17, s2, 7')
    a('s_add_u32 s16, s16, s17')
    a('s_lshr_b32 s17, s2, 3')
    a('s_and_b32 s17, s17, 7')
    a('v_lshlrev_b32 v1, 4, v2')
    for i in range(2):
        a('v_add_u32 v12, %d, v0' % (256 * i))
        a('v_lshlrev_b32 v%d, 6, v12' % (3 + i))
        a('s_mov_b32 s18, 43691')
        a('v_mul_lo_u32 v13, v12, s18')
        a('v_lshrrev_b32 v13, 21, v13')
        a('v_mul_u32_u24 v14, 48, v13')
        a('v_sub_u32 v14, v12, v14')
        a('v_mul_lo_u32 v15, v14, s18')
        a('v_lshrrev_b32 v15, 18, v15')
        a('v_mul_u32_u24 v16, 6, v15')
        a('v_sub_u32 v16, v14, v16')
        a('v_mul_u32_u24 v15, 1296, v15')
        a('v_mul_u32_u24 v13, 160, v13')
        a('v_mul_u32_u24 v16, 28, v16')
        a('v_add3_u32 v%d, v15, v13, v16' % (6 + i))
        a('v_cmp_eq_u32 vcc, 140, v16')
        a('s_mov_b64 s[%d:%d], vcc' % (48 + 2 * i, 49 + 2 * i))
    a('v_cmp_gt_u32 vcc, 128, v0')
    a('s_mov_b64 s[52:53], vcc')
    a('v_mov_b32 v12, 0x7ffffff0')
    a('v_cndmask_b32 v4, v12, v4, vcc')
    for i in range(3):
        a('v_add_u32 v12, %d, v0' % (256 * i))
        a('s_mov_b32 s18, 52429')
        a('v_mul_lo_u32 v13, v12, s18')
        a('v_lshrrev_b32 v13, 22, v13')
        a('v_mul_u32_u24 v14, 80, v13')
        a('v_sub_u32 v14, v12, v14')
        a('v_mul_u32_u24 v13, 1296, v13')
        a('v_lshl_add_u32 v%d, v14, 4, v13' % (24 + i))
        a('v_lshlrev_b32 v%d, 4, v12' % (104 + i))
    a('v_cmp_gt_u32 vcc, 128, v0')
    a('v_mov_b32 v12, 0x7ffffff0')
    a('v_cndmask_b32 v106, v12, v106, vcc')
    a('v_mov_b32 v12, %d' % (L_PX))
    a('v_lshl_add_u32 v12, v0, 4, v12')
    a('v_cndmask_b32 v26, v12, v26, vcc')
    a('v_and_b32 v12, 7, v2')
    a('v_mul_u32_u24 v12, 1296, v12')
    a('v_lshrrev_b32 v13, 4, v2')
    a('v_lshl_add_u32 v5, v13, 4, v12')
    a('s_waitcnt lgkmcnt(0)')
    a('s_lshl_b32 s20, s16, 3')
    a('s_lshl_b32 s21, s3, 1')
    a('s_add_u32 s20, s20, s21')
    a('s_mul_i32 s20, s20, 20480')
    a('s_add_u32 s20, s20, %d' % WS_WQF)
    for m in range(2):
        for t in range(2):
            for ks in range(20):
                a('s_add_u32 s21, s20, %d' % (m * 5242880 + t * 20480 + ks * 1024))
                a('buffer_load_dwordx4 %s, v1, s[4:7], s21 offen' % wreg(m, t, ks))
    for ks in range(20):
        a('s_add_u32 s21, s20, %d' % (2 * 5242880 + ks * 1024))
        a('buffer_load_dwordx4 %s, v1, s[4:7], s21 offen' % wreg(2, 0, ks))
    a('s_mul_i32 s22, s3, 20480')
    for ks in range(20):
        a('s_add_u32 s21, s20, %d' % (2 * 5242880 + 20480 + ks * 1024))
        a('s_add_u32 m0, s22, %d' % (L_WV1 + ks * 1024))
        a('buffer_load_dwordx4 v1, s[4:7], s21 offen lds')
    a('s_mul_i32 s23, s17, 5')
    a('s_lshl_b32 s23, s23, 7')
    a('s_lshl_b32 s24, s16, 2')
    a('s_add_u32 s23, s23, s24')
    a('s_add_u32 s23, s23, s3')
    a('s_lshl_b32 s23, s23, 10')
    a('s_add_u32 s23, s23, %d' % WS_WOF)
    a('s_mul_i32 s22, s3, 5120')
    for t in range(5):
        a('s_add_u32 s21, s23, %d' % (t * 131072))
        a('s_add_u32 m0, s22, %d' % (L_WO + t * 1024))
        a('buffer_load_dwordx4 v1, s[4:7], s21 offen lds')
    a('s_mul_i32 s22, s3, 20480')
    a('s_add_u32 s22, s22, %d' % L_WV1)
    a('v_add_u32 v9, s22, v1')
    a('s_mul_i32 s22, s3, 5120')
    a('s_add_u32 s22, s22, %d' % L_WO)
    a('v_add_u32 v10, s22, v1')
    a('s_lshl_b32 s25, s16, 2')
    a('s_add_u32 s25, s25, s3')
    a('s_lshl_b32 s25, s25, 10')
    a('s_add_u32 s25, s25, %d' % WS_KF)
    a('s_lshl_b32 s26, s16, 3')
    a('s_lshl_b32 s21, s3, 1')
    a('s_add_u32 s26, s26, s21')
    a('s_lshl_b32 s26, s26, 10')
    a('s_add_u32 s26, s26, %d' % WS_VF)
    def prefetch():
        a('buffer_load_dwordx4 v[64:67], v1, s[4:7], s25 offen')
        a('s_add_u32 s21, s25, 131072')
        a('buffer_load_dwordx4 v[68:71], v1, s[4:7], s21 offen')
        a('buffer_load_dwordx4 v[72:75], v1, s[4:7], s26 offen')
        a('buffer_load_dwordx4 v[76:79], v1, s[4:7], s26 offen offset:1024')
        a('s_add_u32 s25, s25, 262144')
        a('s_add_u32 s26, s26, 262144')
    prefetch()
    a('s_lshl_b32 s27, s16, 2')
    a('s_add_u32 s27, s27, s3')
    a('s_lshl_b32 s27, s27, 10')
    a('s_add_u32 s27, s27, %d' % WS_KMF)
    a('s_lshl_b32 s28, s16, 3')
    a('s_lshl_b32 s21, s3, 1')
    a('s_add_u32 s28, s28, s21')
    a('s_lshl_b32 s28, s28, 9')
    a('s_add_u32 s28, s28, %d' % WS_VMF)
    a('v_lshlrev_b32 v11, 3, v2')
    a('s_mul_i32 s29, s17, 3072')
    a('s_lshl_b32 s21, s3, 8')
    a('s_add_u32 s29, s29, s21')
    a('s_add_u32 s29, s29, %d' % WS_ACC)
    a('v_lshlrev_b32 v108, 2, v2')
    a('s_mov_b32 s34, %d' % WS_ACC)
    for u in range(3):
        a('s_lshl_b32 s21, s3, 2')
        a('s_add_u32 s21, s21, %d' % (16 * u))
        a('v_lshrrev_b32 v12, 4, v2')
        a('v_add_u32 v12, s21, v12')
        a('s_mov_b32 s18, 43691')
        a('v_mul_lo_u32 v13, v12, s18')
        a('v_lshrrev_b32 v13, 18, v13')
        a('v_mul_u32_u24 v14, 6, v13')
        a('v_sub_u32 v14, v12, v14')
        a('v_mul_u32_u24 v14, 14, v14')
        a('v_and_b32 v15, 15, v2')
        a('v_add_u32 v14, v14, v15')
        a('v_subrev_u32 v14, 1, v14')
        a('v_cmp_gt_u32 vcc, 80, v14')
        a('s_mov_b64 s[%d:%d], vcc' % (54 + 2 * u, 55 + 2 * u))
        a('v_min_u32 v14, 79, v14')
        a('v_lshrrev_b32 v15, 4, v14')
        a('v_lshlrev_b32 v15, 10, v15')
        a('v_and_b32 v16, 15, v14')
        a('v_lshl_add_u32 v15, v16, 4, v15')
        a('v_lshrrev_b32 v16, 2, v13')
        a('v_lshl_add_u32 v15, v16, 8, v15')
        a('v_and_b32 v16, 3, v13')
        a('v_lshl_add_u32 v15, v16, 2, v15')
        a('v_add_u32 v%d, %d, v15' % ([8, 109, 0][u], L_PX))
    a('s_mov_b32 s60, 0x80018001')
    a('s_mov_b32 s61, 0x80018001')
    a('s_mov_b32 s35, 0')
    a('s_lshl_b32 s47, s2, 2')
    a('s_add_u32 s47, s47, s3')
    a('s_lshl_b32 s47, s47, 12')
    a('s_add_u32 s47, s47, %d' % WS_DBGT)
    a('v_mov_b32 v111, 0')
    a('s_mov_b32 s36, 0')
    a('s_mov_b32 s38, 0')
    a('s_mov_b32 s39, -1')
    a('s_mov_b32 s40, 0x3db50000')
    a('s_mov_b32 s41, 0x3fb8aa3b')
    for i in range(3):
        a('buffer_load_dwordx4 v[%d:%d], v%d, s[8:11], 0 offen' % (12 + 4 * i, 15 + 4 * i, 104 + i))
    a('s_waitcnt vmcnt(0)')
    for i in range(3):
        a('ds_write_b128 v%d, v[%d:%d]' % (24 + i, 12 + 4 * i, 15 + 4 * i))
    a('s_branch K4_GOTW')
    a.label('K4_STEP')
    stamp(0)
    a('s_mov_b32 s37, 0')
    a('s_sleep %d' % sleep0)
    a.label('K4_POLL')
    for i in range(2):
        for q in range(4):
            a('buffer_load_dwordx4 v[%d:%d], v%d, s[4:7], s34 offen offset:%d sc1' % (12 + 16 * i + 4 * q, 15 + 16 * i + 4 * q, 3 + i, 16 * q))
    a('s_waitcnt vmcnt(0)')
    a('s_mov_b32 s21, 0x42000000')
    a('v_cmp_neq_f32 vcc, s21, v12')
    a('v_cmp_neq_f32 s[22:23], s21, v27')
    a('s_or_b64 vcc, vcc, s[22:23]')
    a('v_cmp_neq_f32 s[22:23], s21, v28')
    a('s_and_b64 s[22:23], s[22:23], s[52:53]')
    a('s_or_b64 vcc, vcc, s[22:23]')
    a('v_cmp_neq_f32 s[22:23], s21, v43')
    a('s_and_b64 s[22:23], s[22:23], s[52:53]')
    a('s_or_b64 vcc, vcc, s[22:23]')
    a('s_cbranch_vccz K4_RDY')
    a('s_add_u32 s37, s37, 1')
    a('s_cmp_lg_u32 s36, 0')
    a('s_cbranch_scc1 K4_RDY')
    a('s_sleep %d' % sleep1)
    a('s_cmp_lt_u32 s37, %d' % SPIN_MAX)
    a('s_cbranch_scc1 K4_POLL')
    a('s_mov_b32 s36, 1')
    a.label('K4_RDY')
    stamp(7)
    a('s_add_u32 s34, s34, 24576')
    for i in range(2):
        if i == 1: a('s_mov_b64 exec, s[52:53]')
        b = 12 + 16 * i
        for e in range(1, 15, 2):
            a('v_cvt_pk_bf16_f32 v%d, v%d, v%d' % (b + e, b + e, b + e + 1))
        for e in range(1, 11):
            r = b + e if e & 1 else b + e - 1
            a('ds_write_b16%s v%d, v%d offset:%d' % ('' if e & 1 else '_d16_hi', 6 + i, r, (e - 1) * 2))
        a('s_andn2_b64 exec, exec, s[%d:%d]' % (48 + 2 * i, 49 + 2 * i))
        for e in range(11, 15):
            r = b + e if e & 1 else b + e - 1
            a('ds_write_b16%s v%d, v%d offset:%d' % ('' if e & 1 else '_d16_hi', 6 + i, r, (e - 1) * 2))
        a('s_mov_b64 exec, -1')
    a.label('K4_GOTW')
    stamp(1)
    a('s_waitcnt vmcnt(0) lgkmcnt(0)')
    a('s_barrier')
    stamp(2)
    def rdm(ks):
        b = 12 + (ks & 1) * 4
        a('ds_read_b128 v[%d:%d], v5 offset:%d' % (b, b + 3, L_MEMF + ks * 64))
    rdm(0)
    for ks in range(20):
        if ks + 1 < 20: rdm(ks + 1)
        M = 'v[%d:%d]' % (12 + (ks & 1) * 4, 15 + (ks & 1) * 4)
        C = lambda r: ('0' if ks == 0 else 'v[%d:%d]' % (r, r + 3))
        for t in range(2):
            r = 40 + 4 * t; a('v_mfma_f32_16x16x32_bf16 v[%d:%d], %s, %s, %s' % (r, r + 3, wreg(0, t, ks), M, C(r)))
            r = 48 + 4 * t; a('v_mfma_f32_16x16x32_bf16 v[%d:%d], %s, %s, %s' % (r, r + 3, wreg(1, t, ks), M, C(r)))
    stamp(3)
    vg = []
    def vrd(ks):
        b = 12 + (ks & 1) * 4; c = 20 + (ks & 1) * 4
        return ['ds_read_b128 v[%d:%d], v5 offset:%d' % (b, b + 3, L_MEMF + ks * 64),
                'ds_read_b128 v[%d:%d], v9 offset:%d' % (c, c + 3, ks * 1024)]
    for ks in range(20):
        g = []
        if ks + 1 < 20: g += vrd(ks + 1)
        M = 'v[%d:%d]' % (12 + (ks & 1) * 4, 15 + (ks & 1) * 4)
        W1 = 'v[%d:%d]' % (20 + (ks & 1) * 4, 23 + (ks & 1) * 4)
        C = lambda r: ('0' if ks == 0 else 'v[%d:%d]' % (r, r + 3))
        g.append('v_mfma_f32_16x16x32_bf16 v[56:59], %s, %s, %s' % (M, wreg(2, 0, ks), C(56)))
        g.append('v_mfma_f32_16x16x32_bf16 v[60:63], %s, %s, %s' % (M, W1, C(60)))
        vg.append(g)
    main = []
    m_ = main.append
    for l in vrd(0): m_(l)
    for i in range(4): m_('v_cvt_pk_bf16_f32 v%d, v%d, v%d' % (80 + i, 40 + 2 * i, 41 + 2 * i))
    for i in range(4): m_('v_cvt_pk_bf16_f32 v%d, v%d, v%d' % (84 + i, 48 + 2 * i, 49 + 2 * i))
    m_('v_mfma_f32_16x16x32_bf16 v[92:95], v[84:87], v[80:83], 0')
    m_('v_mfma_f32_16x16x32_bf16 v[96:99], v[64:67], v[80:83], 0')
    m_('v_mfma_f32_16x16x32_bf16 v[100:103], v[68:71], v[80:83], 0')
    m_('s_mul_i32 s21, s3, 3072')
    m_('v_add_u32 v104, s21, v1')
    for l in main: a(l)
    for g in vg[0:2]:
        for l in g: a(l)
    for t in range(3):
        a('ds_write_b128 v104, v[%d:%d] offset:%d' % (92 + 4 * t, 95 + 4 * t, L_SX + t * 1024))
    for g in vg[2:5]:
        for l in g: a(l)
    a('s_waitcnt lgkmcnt(0)')
    a('s_barrier')
    stamp(4)
    main = []
    m_ = main.append
    for half in range(2):
        for t in range(3):
            for w in range(2):
                r = 28 + (t * 2 + w) * 4
                m_('ds_read_b128 v[%d:%d], v1 offset:%d' % (r, r + 3, L_SX + (half * 2 + w) * 3072 + t * 1024))
        for t in range(3):
            for i in range(4):
                r0 = 28 + (t * 2) * 4 + i; r1 = r0 + 4
                if half == 0: m_('v_add_f32 v%d, v%d, v%d' % (92 + 4 * t + i, r0, r1))
                else:
                    m_('v_add_f32 v%d, v%d, v%d' % (r0, r0, r1))
                    m_('v_add_f32 v%d, v%d, v%d' % (92 + 4 * t + i, 92 + 4 * t + i, r0))
    for r in range(92, 104, 2):
        tmp = 104 + ((r >> 1) & 1)
        m_('v_cvt_pk_bf16_f32 v%d, v%d, v%d' % (tmp, r, r + 1))
        m_('v_lshlrev_b32 v%d, 16, v%d' % (r, tmp))
        m_('v_and_b32 v%d, 0xffff0000, v%d' % (r + 1, tmp))
        m_('v_mul_f32 v%d, s40, v%d' % (r, r))
        m_('v_mul_f32 v%d, s40, v%d' % (r + 1, r + 1))
        m_('v_cvt_pk_bf16_f32 v%d, v%d, v%d' % (tmp, r, r + 1))
        m_('v_lshlrev_b32 v%d, 16, v%d' % (r, tmp))
        m_('v_and_b32 v%d, 0xffff0000, v%d' % (r + 1, tmp))
    m_('v_mov_b32 v104, 0xce6e6b28')
    for r in range(92, 96): m_('v_cndmask_b32 v%d, v%d, v104, s[38:39]' % (r, r))
    m_('v_max3_f32 v104, v92, v93, v94')
    m_('v_max3_f32 v105, v95, v96, v97')
    m_('v_max3_f32 v106, v98, v99, v100')
    m_('v_max3_f32 v107, v101, v102, v103')
    m_('v_max3_f32 v104, v104, v105, v106')
    m_('v_max_f32 v104, v104, v107')
    def xred(f, op, r, t):
        f('v_mov_b32 v%d, v%d' % (t, r))
        f('v_permlane32_swap_b32 v%d, v%d' % (r, t))
        f('%s v%d, v%d, v%d' % (op, r, r, t))
        f('v_mov_b32 v%d, v%d' % (t, r))
        f('v_permlane16_swap_b32 v%d, v%d' % (r, t))
        f('%s v%d, v%d, v%d' % (op, r, r, t))
    xred(m_, 'v_max_f32', 104, 105)
    m_('v_mul_f32 v104, s41, v104')
    for r in range(92, 104): m_('v_fma_f32 v%d, v%d, s41, -v104' % (r, r))
    for r in range(92, 104): m_('v_exp_f32 v%d, v%d' % (r, r))
    m_('v_add_f32 v104, v92, v93'); m_('v_add_f32 v105, v94, v95'); m_('v_add_f32 v106, v96, v97'); m_('v_add_f32 v107, v98, v99')
    m_('v_add_f32 v104, v104, v100'); m_('v_add_f32 v105, v105, v101'); m_('v_add_f32 v106, v106, v102'); m_('v_add_f32 v107, v107, v103')
    m_('v_add_f32 v104, v104, v105'); m_('v_add_f32 v106, v106, v107'); m_('v_add_f32 v104, v104, v106')
    xred(m_, 'v_add_f32', 104, 105)
    m_('v_rcp_f32 v104, v104')
    for r in range(92, 104): m_('v_mul_f32 v%d, v%d, v104' % (r, r))
    m_('v_cvt_pk_bf16_f32 v40, v92, v93'); m_('v_cvt_pk_bf16_f32 v41, v94, v95')
    for i in range(4): m_('v_cvt_pk_bf16_f32 v%d, v%d, v%d' % (44 + i, 96 + 2 * i, 97 + 2 * i))
    for l in interleave(main, vg[5:], 9): a(l)
    stamp(9)
    for t in range(5):
        a('ds_read_b128 v[%d:%d], v10 offset:%d' % (12 + 4 * t, 15 + 4 * t, t * 1024))
    for i in range(4): a('v_cvt_pk_bf16_f32 v%d, v%d, v%d' % (88 + i, 56 + 2 * i, 57 + 2 * i))
    a('s_cmp_lg_u32 s17, 0')
    a('s_cbranch_scc1 K4_NOSAVE')
    a('buffer_store_dwordx4 v[84:87], v1, s[4:7], s27 offen')
    a('buffer_store_dwordx2 v[88:89], v11, s[4:7], s28 offen')
    a('buffer_store_dwordx2 v[90:91], v11, s[4:7], s28 offen offset:512')
    a.label('K4_NOSAVE')
    a('s_add_u32 s27, s27, 131072')
    a('s_add_u32 s28, s28, 131072')
    a('s_cmp_eq_u32 s35, %d' % (nsteps - 1))
    a('s_cbranch_scc1 K4_END')
    for t in range(2):
        a('v_mfma_f32_16x16x32_bf16 v[%d:%d], v[%d:%d], v[44:47], 0' % (48 + 4 * t, 51 + 4 * t, 72 + 4 * t, 75 + 4 * t))
    for t in range(2):
        a('v_mfma_f32_16x16x16_bf16 v[%d:%d], v[%d:%d], v[40:41], v[%d:%d]' % (48 + 4 * t, 51 + 4 * t, 88 + 2 * t, 89 + 2 * t, 48 + 4 * t, 51 + 4 * t))
    for i in range(4): a('v_cvt_pk_bf16_f32 v%d, v%d, v%d' % (56 + i, 48 + 2 * i, 49 + 2 * i))
    stamp(10)
    prefetch()
    a('s_waitcnt lgkmcnt(0)')
    for t in range(5):
        a('v_mfma_f32_16x16x32_bf16 v[%d:%d], v[56:59], v[%d:%d], 0' % (32 + 4 * t, 35 + 4 * t, 12 + 4 * t, 15 + 4 * t))
    a('s_mul_i32 s21, s3, 5120')
    a('v_add_u32 v104, s21, v1')
    for t in range(5):
        a('ds_write_b128 v104, v[%d:%d] offset:%d' % (32 + 4 * t, 35 + 4 * t, L_PX + t * 1024))
    a('s_waitcnt lgkmcnt(0)')
    stamp(11)
    a('s_barrier')
    stamp(5)
    for u in range(3):
        ad = [8, 109, 0][u]
        for w in range(4):
            a('ds_read_b32 v%d, v%d offset:%d' % (40 + 4 * u + w, ad, w * 5120))
    a('v_mov_b32 v104, 1.0')
    for u in range(3):
        r = 40 + 4 * u
        a('v_add_f32 v%d, v%d, v%d' % (r, r, r + 1))
        a('v_add_f32 v%d, v%d, v%d' % (r + 2, r + 2, r + 3))
        a('v_add_f32 v%d, v%d, v%d' % (r, r, r + 2))
        a('v_cndmask_b32 v%d, 0, v%d, s[%d:%d]' % (r, r, 54 + 2 * u, 55 + 2 * u))
        a('v_cndmask_b32 v%d, v%d, v104, s[60:61]' % (r, r))
        a('buffer_atomic_add_f32 v%d, v108, s[4:7], s29 offen offset:%d' % (r, u * 1024))
    a('s_add_u32 s29, s29, 24576')
    stamp(8)
    a('s_add_u32 s35, s35, 1')
    a('s_nop 7')
    a('s_branch K4_STEP')
    a.label('K4_END')
    return kernel_text('k4_kernel', a.finalize(), 512, 64, accum=256)
```

```python
from asmgen import *
from layout import *

import k2
K5A_GRID = 512 + k2.K2B_GRID
K5B_GRID = 256
K5B_LDS = 81920

def gen_k5a():
    a = Asm()
    a('s_load_dwordx2 s[4:5], s[0:1], %d' % KA_WS)
    a('s_cmp_ge_u32 s2, %d' % K5A_GRID)
    a('s_cbranch_scc1 K5A_END')
    a('s_cmp_ge_u32 s2, %d' % k2.K2B_GRID)
    a('s_cbranch_scc1 K5A_ATT')
    k2.body_k2b(a)
    a('s_branch K5A_END')
    a.label('K5A_ATT')
    a('s_sub_u32 s2, s2, %d' % k2.K2B_GRID)
    a('v_lshrrev_b32 v1, 6, v0')
    a('v_readfirstlane_b32 s3, v1')
    a('v_and_b32 v2, 63, v0')
    a('s_mov_b32 s6, %d' % WS_SIZE)
    a('s_mov_b32 s7, 0x00020000')
    a('v_lshlrev_b32 v1, 4, v2')
    a('v_lshlrev_b32 v3, 3, v2')
    a('s_lshr_b32 s16, s2, 3')
    a('s_and_b32 s17, s2, 7')
    a('s_lshl_b32 s17, s17, 2')
    a('s_add_u32 s17, s17, s3')
    a('s_lshl_b32 s18, s16, 6')
    a('s_add_u32 s18, s18, s17')
    a('s_lshl_b32 s18, s18, 12')
    a('s_lshl_b32 s19, s16, 5')
    a('s_add_u32 s19, s19, s17')
    a('s_lshl_b32 s20, s19, 12')
    a('s_lshl_b32 s21, s19, 13')
    a('s_waitcnt lgkmcnt(0)')
    for qt in range(2):
        a('s_add_u32 s22, s18, %d' % (WS_QF + qt * 131072))
        for c in range(4):
            r = 16 + (qt * 4 + c) * 4
            a('buffer_load_dwordx4 v[%d:%d], v1, s[4:7], s22 offen offset:%d' % (r, r + 3, c * 1024))
    for kt in range(2):
        a('s_add_u32 s22, s18, %d' % (WS_KF + kt * 131072))
        for c in range(4):
            r = 48 + (kt * 4 + c) * 4
            a('buffer_load_dwordx4 v[%d:%d], v1, s[4:7], s22 offen offset:%d' % (r, r + 3, c * 1024))
    a('s_add_u32 s22, s20, %d' % WS_KMF)
    for c in range(4):
        a('buffer_load_dwordx4 v[%d:%d], v1, s[4:7], s22 offen offset:%d' % (80 + 4 * c, 83 + 4 * c, c * 1024))
    for et in range(8):
        a('s_add_u32 s22, s21, %d' % (WS_VF + et * 1024))
        a('buffer_load_dwordx4 v[%d:%d], v1, s[4:7], s22 offen' % (96 + 4 * et, 99 + 4 * et))
    a('s_add_u32 s22, s20, %d' % WS_VMF)
    for et in range(8):
        a('buffer_load_dwordx2 v[%d:%d], v3, s[4:7], s22 offen offset:%d' % (128 + 2 * et, 129 + 2 * et, et * 512))
    a('v_lshrrev_b32 v4, 4, v2')
    a('v_lshlrev_b32 v4, 2, v4')
    a('v_and_b32 v5, 15, v2')
    for i in range(4):
        a('v_add_u32 v6, %d, v4' % i)
        a('v_cmp_le_u32 s[%d:%d], v6, v5' % (30 + 2 * i, 31 + 2 * i))
    a('s_mov_b32 s38, -1'); a('s_mov_b32 s39, 0')
    a('s_mov_b32 s40, 0x3db50000'); a('s_mov_b32 s41, 0x3fb8aa3b')
    a('s_waitcnt vmcnt(16)')
    for qt in range(2):
        for kt in range(3):
            if qt == 0 and kt == 2: continue
            r = 144 + (qt * 3 + kt) * 4
            for c in range(4):
                K = (80 + 4 * c) if kt == 0 else (48 + ((kt - 1) * 4 + c) * 4)
                Q = 16 + (qt * 4 + c) * 4
                a('v_mfma_f32_16x16x32_bf16 v[%d:%d], v[%d:%d], v[%d:%d], %s' % (r, r + 3, K, K + 3, Q, Q + 3, '0' if c == 0 else 'v[%d:%d]' % (r, r + 3)))
    a('v_mov_b32 v8, 0xce6e6b28')
    def xred(op, r, t):
        a('v_mov_b32 v%d, v%d' % (t, r))
        a('v_permlane32_swap_b32 v%d, v%d' % (r, t))
        a('%s v%d, v%d, v%d' % (op, r, r, t))
        a('v_mov_b32 v%d, v%d' % (t, r))
        a('v_permlane16_swap_b32 v%d, v%d' % (r, t))
        a('%s v%d, v%d, v%d' % (op, r, r, t))
    for qt in range(2):
        base = 144 + qt * 12
        regs = list(range(base, base + (8 if qt == 0 else 12)))
        for r in regs[::2]:
            a('v_cvt_pk_bf16_f32 v9, v%d, v%d' % (r, r + 1))
            a('v_lshlrev_b32 v%d, 16, v9' % r)
            a('v_and_b32 v%d, 0xffff0000, v9' % (r + 1))
            a('v_mul_f32 v%d, s40, v%d' % (r, r))
            a('v_mul_f32 v%d, s40, v%d' % (r + 1, r + 1))
            a('v_cvt_pk_bf16_f32 v9, v%d, v%d' % (r, r + 1))
            a('v_lshlrev_b32 v%d, 16, v9' % r)
            a('v_and_b32 v%d, 0xffff0000, v9' % (r + 1))
        for i in range(4):
            a('v_cndmask_b32 v%d, v8, v%d, s[38:39]' % (base + i, base + i))
        dt = base + 4 if qt == 0 else base + 8
        for i in range(4):
            a('v_cndmask_b32 v%d, v8, v%d, s[%d:%d]' % (dt + i, dt + i, 30 + 2 * i, 31 + 2 * i))
        a('v_max_f32 v10, v%d, v%d' % (regs[0], regs[1]))
        for r in regs[2::2]: a('v_max3_f32 v10, v10, v%d, v%d' % (r, r + 1))
        xred('v_max_f32', 10, 11)
        for r in regs:
            a('v_sub_f32 v%d, v%d, v10' % (r, r))
            a('v_mul_f32 v%d, s41, v%d' % (r, r))
            a('v_exp_f32 v%d, v%d' % (r, r))
        a('v_add_f32 v10, v%d, v%d' % (regs[0], regs[1]))
        for r in regs[2:]: a('v_add_f32 v10, v10, v%d' % r)
        xred('v_add_f32', 10, 11)
        a('v_rcp_f32 v10, v10')
        for r in regs: a('v_mul_f32 v%d, v%d, v10' % (r, r))
        P = 168 + 8 * qt
        a('v_cvt_pk_bf16_f32 v%d, v%d, v%d' % (P, base, base + 1))
        a('v_cvt_pk_bf16_f32 v%d, v%d, v%d' % (P + 1, base + 2, base + 3))
        a('v_cvt_pk_bf16_f32 v%d, v%d, v%d' % (P + 4, base + 4, base + 5))
        a('v_cvt_pk_bf16_f32 v%d, v%d, v%d' % (P + 5, base + 6, base + 7))
        if qt == 0:
            a('v_mov_b32 v%d, 0' % (P + 6)); a('v_mov_b32 v%d, 0' % (P + 7))
        else:
            a('v_cvt_pk_bf16_f32 v%d, v%d, v%d' % (P + 6, base + 8, base + 9))
            a('v_cvt_pk_bf16_f32 v%d, v%d, v%d' % (P + 7, base + 10, base + 11))
    a('s_waitcnt vmcnt(0)')
    for qt in range(2):
        P = 168 + 8 * qt
        for et in range(8):
            r = 184 + (qt * 8 + et) * 4
            a('v_mfma_f32_16x16x32_bf16 v[%d:%d], v[%d:%d], v[%d:%d], 0' % (r, r + 3, 96 + 4 * et, 99 + 4 * et, P + 4, P + 7))
        for et in range(8):
            r = 184 + (qt * 8 + et) * 4
            a('v_mfma_f32_16x16x16_bf16 v[%d:%d], v[%d:%d], v[%d:%d], v[%d:%d]' % (r, r + 3, 128 + 2 * et, 129 + 2 * et, P, P + 1, r, r + 3))
    a('s_lshl_b32 s22, s16, 8')
    a('s_lshl_b32 s23, s17, 2')
    a('s_add_u32 s22, s22, s23')
    a('s_lshl_b32 s22, s22, 10')
    a('s_add_u32 s22, s22, %d' % WS_OF)
    for qt in range(2):
        for c in range(4):
            d = 16 + (qt * 4 + c) * 4
            r0 = 184 + (qt * 8 + 2 * c) * 4; r1 = r0 + 4
            a('v_cvt_pk_bf16_f32 v%d, v%d, v%d' % (d, r0, r0 + 1))
            a('v_cvt_pk_bf16_f32 v%d, v%d, v%d' % (d + 1, r0 + 2, r0 + 3))
            a('v_cvt_pk_bf16_f32 v%d, v%d, v%d' % (d + 2, r1, r1 + 1))
            a('v_cvt_pk_bf16_f32 v%d, v%d, v%d' % (d + 3, r1 + 2, r1 + 3))
            a('s_add_u32 s23, s22, %d' % (qt * 131072 + c * 1024))
            a('buffer_store_dwordx4 v[%d:%d], v1, s[4:7], s23 offen' % (d, d + 3))
    a.label('K5A_END')
    return kernel_text('k5a_kernel', a.finalize(), 248, 48)

def gen_k5b():
    a = Asm(auto_lgkm=True)
    a('s_load_dwordx2 s[4:5], s[0:1], %d' % KA_WS)
    a('s_load_dwordx2 s[8:9], s[0:1], %d' % KA_X)
    a('s_load_dwordx2 s[12:13], s[0:1], %d' % KA_OUT)
    a('s_cmp_ge_u32 s2, %d' % K5B_GRID)
    a('s_cbranch_scc1 K5B_END')
    a('v_lshrrev_b32 v1, 6, v0')
    a('v_and_b32 v2, 63, v0')
    a('v_readfirstlane_b32 s3, v1')
    a('s_mov_b32 s6, %d' % WS_SIZE)
    a('s_mov_b32 s7, 0x00020000')
    a('s_mov_b32 s10, %d' % (2048 * 1280)); a('s_mov_b32 s11, 0x00020000')
    a('s_mov_b32 s14, %d' % (2048 * 1280)); a('s_mov_b32 s15, 0x00020000')
    a('s_and_b32 s19, s2, 7')
    a('s_lshr_b32 s18, s2, 3')
    a('v_lshlrev_b32 v3, 4, v2')
    a('s_lshl_b32 s20, s18, 19')
    a('s_lshl_b32 s21, s3, 10')
    a('s_add_u32 s20, s20, s21')
    a('s_add_u32 s20, s20, %d' % WS_OF)
    a('s_mul_i32 s22, s19, %d' % (5 * 131072))
    a('s_add_u32 s22, s22, s21')
    a('s_add_u32 s22, s22, %d' % WS_WOF)
    for r in range(80, 160): a('v_mov_b32 v%d, 0' % r)
    a('s_waitcnt lgkmcnt(0)')
    def issue(buf):
        b = 8 + buf * 36
        for j in range(4):
            a('s_add_u32 s23, s20, %d' % (j * 131072))
            a('buffer_load_dwordx4 v[%d:%d], v3, s[4:7], s23 offen' % (b + 4 * j, b + 4 * j + 3))
        for i in range(5):
            a('s_add_u32 s23, s22, %d' % (i * 131072))
            a('buffer_load_dwordx4 v[%d:%d], v3, s[4:7], s23 offen' % (b + 16 + 4 * i, b + 19 + 4 * i))
        a('s_add_u32 s20, s20, 4096')
        a('s_add_u32 s22, s22, 4096')
    def comp(buf):
        b = 8 + buf * 36
        for i in range(5):
            for j in range(4):
                acc = 80 + (i * 4 + j) * 4
                a('v_mfma_f32_16x16x32_bf16 v[%d:%d], v[%d:%d], v[%d:%d], v[%d:%d]' % (acc, acc + 3, b + 16 + 4 * i, b + 19 + 4 * i, b + 4 * j, b + 4 * j + 3, acc, acc + 3))
    issue(0)
    a('s_mov_b32 s29, 0')
    a.label('K5B_LOOP')
    issue(1)
    a('s_waitcnt vmcnt(9)')
    comp(0)
    issue(0)
    a('s_waitcnt vmcnt(9)')
    comp(1)
    a('s_add_u32 s29, s29, 1')
    a('s_cmp_lt_u32 s29, 16')
    a('s_cbranch_scc1 K5B_LOOP')
    a('s_waitcnt vmcnt(0)')
    a('s_nop 7')
    a('s_mul_i32 s23, s3, 20480')
    a('v_add_u32 v4, s23, v3')
    for t in range(20):
        a('ds_write_b128 v4, v[%d:%d] offset:%d' % (80 + 4 * t, 83 + 4 * t, t * 1024))
    a('s_waitcnt lgkmcnt(0)')
    a('s_barrier')
    a('s_lshl_b32 s23, s3, 10')
    a('v_add_u32 v4, s23, v3')
    a('v_add_u32 v5, 40960, v4')
    for i in range(5):
        for w in range(4):
            a('ds_read_b128 v[%d:%d], v%d offset:%d' % (8 + 4 * w, 11 + 4 * w, 4 + (w >> 1), (w & 1) * 20480 + i * 4096))
        for e in range(4):
            a('v_add_f32 v%d, v%d, v%d' % (8 + e, 8 + e, 12 + e))
            a('v_add_f32 v%d, v%d, v%d' % (16 + e, 16 + e, 20 + e))
            a('v_add_f32 v%d, v%d, v%d' % (80 + 4 * i + e, 8 + e, 16 + e))
    a('s_load_dwordx2 s[16:17], s[0:1], %d' % KA_WS)
    a('s_waitcnt lgkmcnt(0)')
    a('s_add_u32 s16, s16, %d' % WS_MISC)
    a('s_addc_u32 s17, s17, 0')
    a('s_load_dwordx8 s[48:55], s[16:17], 0')
    a('s_waitcnt lgkmcnt(0)')
    a('s_lshl_b32 s23, s18, 6')
    a('s_lshl_b32 s24, s3, 4')
    a('s_add_u32 s23, s23, s24')
    a('v_and_b32 v6, 15, v2')
    a('v_add_u32 v8, s23, v6')
    a('s_mul_i32 s23, s19, 80')
    a('v_lshrrev_b32 v7, 4, v2')
    a('v_lshlrev_b32 v7, 2, v7')
    a('v_add_u32 v7, s23, v7')
    a('v_mul_u32_u24 v9, 1280, v8')
    a('v_lshl_add_u32 v9, v7, 1, v9')
    a('v_mov_b32 v10, 0x7ffffff0')
    for t in range(8):
        a('v_cmp_eq_u32 vcc, s%d, v8' % (48 + t))
        a('v_mov_b32 v11, %d' % (t * 2560))
        a('v_cndmask_b32 v10, v10, v11, vcc')
    a('v_lshl_add_u32 v10, v7, 2, v10')
    a('s_mov_b32 s23, %d' % WS_XN)
    a('s_mov_b32 s24, %d' % WS_Y)
    for i in range(5):
        a('buffer_load_dwordx2 v[%d:%d], v9, s[8:11], 0 offen offset:%d' % (16 + 2 * i, 17 + 2 * i, 32 * i))
        a('buffer_load_dwordx2 v[%d:%d], v9, s[4:7], s23 offen offset:%d' % (28 + 2 * i, 29 + 2 * i, 32 * i))
        a('buffer_load_dwordx4 v[%d:%d], v10, s[4:7], s24 offen offset:%d' % (40 + 4 * i, 43 + 4 * i, 64 * i))
    a('s_waitcnt vmcnt(0)')
    for i in range(5):
        acc = 80 + 4 * i
        for e in range(4):
            src = 16 + 2 * i + e // 2; srn = 28 + 2 * i + e // 2
            if e & 1:
                a('v_and_b32 v12, 0xffff0000, v%d' % src); a('v_and_b32 v13, 0xffff0000, v%d' % srn)
            else:
                a('v_lshlrev_b32 v12, 16, v%d' % src); a('v_lshlrev_b32 v13, 16, v%d' % srn)
            r = acc + e
            a('v_cvt_pk_bf16_f32 v%d, v%d, v%d' % (r, r, r)); a('v_and_b32 v%d, 0xffff0000, v%d' % (r, r))
            a('v_add_f32 v%d, v12, v%d' % (r, r))
            a('v_cvt_pk_bf16_f32 v%d, v%d, v%d' % (r, r, r)); a('v_and_b32 v%d, 0xffff0000, v%d' % (r, r))
            a('v_add_f32 v13, v13, v%d' % (40 + 4 * i + e))
            a('v_cvt_pk_bf16_f32 v13, v13, v13'); a('v_and_b32 v13, 0xffff0000, v13')
            a('v_add_f32 v%d, v%d, v13' % (r, r))
        a('v_cvt_pk_bf16_f32 v14, v%d, v%d' % (acc, acc + 1))
        a('v_cvt_pk_bf16_f32 v15, v%d, v%d' % (acc + 2, acc + 3))
        a('buffer_store_dwordx2 v[14:15], v9, s[12:15], 0 offen offset:%d' % (32 * i))
    a.label('K5B_END')
    return kernel_text('k5b_kernel', a.finalize(), 160, 64)
```

```python
WS_XN   = 0x0000000
WS_XF   = 0x0280000
WS_R    = 0x0500000
WS_MISC = 0x0510000
WS_HF   = 0x0520000
WS_Y    = 0x0540000
WS_WQF  = 0x0600000
WS_WOF  = 0x1500000
WS_WGF  = 0x1A00000
WS_WUF  = 0x1C80000
WS_WDF  = 0x1F00000
WS_QF   = 0x2200000
WS_KF   = 0x3200000
WS_VF   = 0x4200000
WS_OF   = 0x5200000
WS_KMF  = 0x6200000
WS_VMF  = 0x6A00000
WS_MEM  = 0x7200000
WS_ACC  = 0x7200000
WS_CNT  = 0x7380000
WS_FLG  = 0x73C0000
WS_ZEND = 0x75C0000
MEM_COPIES = 8
MEM_CSTRIDE = 0xA8000
WS_PB   = 0x7800000
WS_END  = 0xA000000
WS_SIZE = 268435456
KA_X=0; KA_MEM0=8; KA_WQ=16; KA_WK=24; KA_WV=32; KA_WO=40; KA_SEG=48; KA_BX=56; KA_WR=64; KA_WG=72; KA_WU=80; KA_WD=88; KA_OUT=96; KA_DBG=104; KA_WS=112
```

```python
from asmgen import *
from layout import *

K4_GRID = 256
L_MEMF = 0
L_SX = 20480
L_PX = 32768
L_WO = 53248
L_WV1 = 73728
K4_LDS = 155648
SPIN_MAX = 1 << 16
WS_DBGT = 0xA000000

def wreg(m, t, ks):
    if m == 0:
        b = (t * 20 + ks) * 4; return 'a[%d:%d]' % (b, b + 3)
    if m == 1:
        b = 160 + (t * 20 + ks) * 4
        if b < 256: return 'a[%d:%d]' % (b, b + 3)
        b = 192 + (b - 256); return 'v[%d:%d]' % (b, b + 3)
    b = 112 + ks * 4; return 'v[%d:%d]' % (b, b + 3)

def interleave(main, side, ratio):
    out = []; si = 0
    for i, m in enumerate(main):
        out.append(m)
        if (i + 1) % ratio == 0 and si < len(side):
            out.extend(side[si]); si += 1
    for g in side[si:]: out.extend(g)
    return out

def gen_k4(nsteps=64, stamps=False, sleep0=26, sleep1=4, pmode=0, cshift=7):
    a = Asm(auto_lgkm=True)
    def stamp(i):
        if not stamps: return
        a('s_memtime s[44:45]')
        a('s_waitcnt lgkmcnt(0)')
        a('v_mov_b32 v110, s44')
        a('s_lshl_b32 s46, s35, 6')
        a('s_add_u32 s46, s46, s47')
        a('s_mov_b64 exec, 1')
        a('buffer_store_dword v110, v111, s[4:7], s46 offen offset:%d' % (i * 4))
        a('s_mov_b64 exec, -1')
    a('s_load_dwordx2 s[4:5], s[0:1], %d' % KA_WS)
    a('s_load_dwordx2 s[8:9], s[0:1], %d' % KA_MEM0)
    a('s_cmp_ge_u32 s2, %d' % K4_GRID)
    a('s_cbranch_scc1 K4_END')
    a('v_lshrrev_b32 v1, 6, v0')
    a('v_readfirstlane_b32 s3, v1')
    a('v_and_b32 v2, 63, v0')
    a('s_mov_b32 s6, %d' % WS_SIZE)
    a('s_mov_b32 s7, 0x00020000')
    a('s_mov_b32 s10, 10240')
    a('s_mov_b32 s11, 0x00020000')
    a('s_lshr_b32 s16, s2, 6')
    a('s_lshl_b32 s16, s16, 3')
    a('s_and_b32 s17, s2, 7')
    a('s_add_u32 s16, s16, s17')
    a('s_lshr_b32 s17, s2, 3')
    a('s_and_b32 s17, s17, 7')
    a('v_lshlrev_b32 v1, 4, v2')
    for i in range(2):
        a('v_add_u32 v12, %d, v0' % (256 * i))
        a('v_lshlrev_b32 v%d, 6, v12' % (3 + i))
        a('s_mov_b32 s18, 43691')
        a('v_mul_lo_u32 v13, v12, s18')
        a('v_lshrrev_b32 v13, 21, v13')
        a('v_mul_u32_u24 v14, 48, v13')
        a('v_sub_u32 v14, v12, v14')
        a('v_mul_lo_u32 v15, v14, s18')
        a('v_lshrrev_b32 v15, 18, v15')
        a('v_mul_u32_u24 v16, 6, v15')
        a('v_sub_u32 v16, v14, v16')
        a('v_mul_u32_u24 v15, 1296, v15')
        a('v_mul_u32_u24 v13, 160, v13')
        a('v_mul_u32_u24 v16, 28, v16')
        a('v_add3_u32 v%d, v15, v13, v16' % (6 + i))
        a('v_cmp_eq_u32 vcc, 140, v16')
        a('s_mov_b64 s[%d:%d], vcc' % (48 + 2 * i, 49 + 2 * i))
    a('v_cmp_gt_u32 vcc, 128, v0')
    a('s_mov_b64 s[52:53], vcc')
    a('v_mov_b32 v12, 0x7ffffff0')
    a('v_cndmask_b32 v4, v12, v4, vcc')
    for i in range(3):
        a('v_add_u32 v12, %d, v0' % (256 * i))
        a('s_mov_b32 s18, 52429')
        a('v_mul_lo_u32 v13, v12, s18')
        a('v_lshrrev_b32 v13, 22, v13')
        a('v_mul_u32_u24 v14, 80, v13')
        a('v_sub_u32 v14, v12, v14')
        a('v_mul_u32_u24 v13, 1296, v13')
        a('v_lshl_add_u32 v%d, v14, 4, v13' % (24 + i))
        a('v_lshlrev_b32 v%d, 4, v12' % (104 + i))
    a('v_cmp_gt_u32 vcc, 128, v0')
    a('v_mov_b32 v12, 0x7ffffff0')
    a('v_cndmask_b32 v106, v12, v106, vcc')
    a('v_mov_b32 v12, %d' % (L_PX))
    a('v_lshl_add_u32 v12, v0, 4, v12')
    a('v_cndmask_b32 v26, v12, v26, vcc')
    a('v_and_b32 v12, 7, v2')
    a('v_mul_u32_u24 v12, 1296, v12')
    a('v_lshrrev_b32 v13, 4, v2')
    a('v_lshl_add_u32 v5, v13, 4, v12')
    a('s_waitcnt lgkmcnt(0)')
    a('s_lshl_b32 s20, s16, 3')
    a('s_lshl_b32 s21, s3, 1')
    a('s_add_u32 s20, s20, s21')
    a('s_mul_i32 s20, s20, 20480')
    a('s_add_u32 s20, s20, %d' % WS_WQF)
    for m in range(2):
        for t in range(2):
            for ks in range(20):
                a('s_add_u32 s21, s20, %d' % (m * 5242880 + t * 20480 + ks * 1024))
                a('buffer_load_dwordx4 %s, v1, s[4:7], s21 offen' % wreg(m, t, ks))
    for ks in range(20):
        a('s_add_u32 s21, s20, %d' % (2 * 5242880 + ks * 1024))
        a('buffer_load_dwordx4 %s, v1, s[4:7], s21 offen' % wreg(2, 0, ks))
    a('s_mul_i32 s22, s3, 20480')
    for ks in range(20):
        a('s_add_u32 s21, s20, %d' % (2 * 5242880 + 20480 + ks * 1024))
        a('s_add_u32 m0, s22, %d' % (L_WV1 + ks * 1024))
        a('buffer_load_dwordx4 v1, s[4:7], s21 offen lds')
    a('s_mul_i32 s23, s17, 5')
    a('s_lshl_b32 s23, s23, 7')
    a('s_lshl_b32 s24, s16, 2')
    a('s_add_u32 s23, s23, s24')
    a('s_add_u32 s23, s23, s3')
    a('s_lshl_b32 s23, s23, 10')
    a('s_add_u32 s23, s23, %d' % WS_WOF)
    a('s_mul_i32 s22, s3, 5120')
    for t in range(5):
        a('s_add_u32 s21, s23, %d' % (t * 131072))
        a('s_add_u32 m0, s22, %d' % (L_WO + t * 1024))
        a('buffer_load_dwordx4 v1, s[4:7], s21 offen lds')
    a('s_mul_i32 s22, s3, 20480')
    a('s_add_u32 s22, s22, %d' % L_WV1)
    a('v_add_u32 v9, s22, v1')
    a('s_mul_i32 s22, s3, 5120')
    a('s_add_u32 s22, s22, %d' % L_WO)
    a('v_add_u32 v10, s22, v1')
    a('s_lshl_b32 s25, s16, 2')
    a('s_add_u32 s25, s25, s3')
    a('s_lshl_b32 s25, s25, 10')
    a('s_add_u32 s25, s25, %d' % WS_KF)
    a('s_lshl_b32 s26, s16, 3')
    a('s_lshl_b32 s21, s3, 1')
    a('s_add_u32 s26, s26, s21')
    a('s_lshl_b32 s26, s26, 10')
    a('s_add_u32 s26, s26, %d' % WS_VF)
    def prefetch():
        a('buffer_load_dwordx4 v[64:67], v1, s[4:7], s25 offen')
        a('s_add_u32 s21, s25, 131072')
        a('buffer_load_dwordx4 v[68:71], v1, s[4:7], s21 offen')
        a('buffer_load_dwordx4 v[72:75], v1, s[4:7], s26 offen')
        a('buffer_load_dwordx4 v[76:79], v1, s[4:7], s26 offen offset:1024')
        a('s_add_u32 s25, s25, 262144')
        a('s_add_u32 s26, s26, 262144')
    prefetch()
    a('s_lshl_b32 s27, s16, 2')
    a('s_add_u32 s27, s27, s3')
    a('s_lshl_b32 s27, s27, 10')
    a('s_add_u32 s27, s27, %d' % WS_KMF)
    a('s_lshl_b32 s28, s16, 3')
    a('s_lshl_b32 s21, s3, 1')
    a('s_add_u32 s28, s28, s21')
    a('s_lshl_b32 s28, s28, 9')
    a('s_add_u32 s28, s28, %d' % WS_VMF)
    a('v_lshlrev_b32 v11, 3, v2')
    a('s_mul_i32 s29, s17, 3072')
    a('s_lshl_b32 s21, s3, 8')
    a('s_add_u32 s29, s29, s21')
    a('s_add_u32 s29, s29, %d' % WS_ACC)
    a('v_lshlrev_b32 v108, 2, v2')
    a('s_mov_b32 s34, %d' % WS_ACC)
    for u in range(3):
        a('s_lshl_b32 s21, s3, 2')
        a('s_add_u32 s21, s21, %d' % (16 * u))
        a('v_lshrrev_b32 v12, 4, v2')
        a('v_add_u32 v12, s21, v12')
        a('s_mov_b32 s18, 43691')
        a('v_mul_lo_u32 v13, v12, s18')
        a('v_lshrrev_b32 v13, 18, v13')
        a('v_mul_u32_u24 v14, 6, v13')
        a('v_sub_u32 v14, v12, v14')
        a('v_mul_u32_u24 v14, 14, v14')
        a('v_and_b32 v15, 15, v2')
        a('v_add_u32 v14, v14, v15')
        a('v_subrev_u32 v14, 1, v14')
        a('v_cmp_gt_u32 vcc, 80, v14')
        a('s_mov_b64 s[%d:%d], vcc' % (54 + 2 * u, 55 + 2 * u))
        a('v_min_u32 v14, 79, v14')
        a('v_lshrrev_b32 v15, 4, v14')
        a('v_lshlrev_b32 v15, 10, v15')
        a('v_and_b32 v16, 15, v14')
        a('v_lshl_add_u32 v15, v16, 4, v15')
        a('v_lshrrev_b32 v16, 2, v13')
        a('v_lshl_add_u32 v15, v16, 8, v15')
        a('v_and_b32 v16, 3, v13')
        a('v_lshl_add_u32 v15, v16, 2, v15')
        a('v_add_u32 v%d, %d, v15' % ([8, 109, 0][u], L_PX))
    a('s_mov_b32 s60, 0x80018001')
    a('s_mov_b32 s61, 0x80018001')
    a('s_mov_b32 s35, 0')
    a('s_lshl_b32 s47, s2, 2')
    a('s_add_u32 s47, s47, s3')
    a('s_lshl_b32 s47, s47, 12')
    a('s_add_u32 s47, s47, %d' % WS_DBGT)
    a('v_mov_b32 v111, 0')
    a('s_mov_b32 s36, 0')
    a('s_mov_b32 s38, 0')
    a('s_mov_b32 s39, -1')
    a('s_mov_b32 s40, 0x3db50000')
    a('s_mov_b32 s41, 0x3fb8aa3b')
    for i in range(3):
        a('buffer_load_dwordx4 v[%d:%d], v%d, s[8:11], 0 offen' % (12 + 4 * i, 15 + 4 * i, 104 + i))
    a('s_waitcnt vmcnt(0)')
    for i in range(3):
        a('ds_write_b128 v%d, v[%d:%d]' % (24 + i, 12 + 4 * i, 15 + 4 * i))
    a('s_branch K4_GOTW')
    a.label('K4_STEP')
    stamp(0)
    a('s_mov_b32 s37, 0')
    a('s_sleep %d' % sleep0)
    a.label('K4_POLL')
    for i in range(2):
        for q in range(4):
            a('buffer_load_dwordx4 v[%d:%d], v%d, s[4:7], s34 offen offset:%d sc1' % (12 + 16 * i + 4 * q, 15 + 16 * i + 4 * q, 3 + i, 16 * q))
    a('s_waitcnt vmcnt(0)')
    a('s_mov_b32 s21, 0x42000000')
    a('v_cmp_neq_f32 vcc, s21, v12')
    a('v_cmp_neq_f32 s[22:23], s21, v27')
    a('s_or_b64 vcc, vcc, s[22:23]')
    a('v_cmp_neq_f32 s[22:23], s21, v28')
    a('s_and_b64 s[22:23], s[22:23], s[52:53]')
    a('s_or_b64 vcc, vcc, s[22:23]')
    a('v_cmp_neq_f32 s[22:23], s21, v43')
    a('s_and_b64 s[22:23], s[22:23], s[52:53]')
    a('s_or_b64 vcc, vcc, s[22:23]')
    a('s_cbranch_vccz K4_RDY')
    a('s_add_u32 s37, s37, 1')
    a('s_cmp_lg_u32 s36, 0')
    a('s_cbranch_scc1 K4_RDY')
    a('s_sleep %d' % sleep1)
    a('s_cmp_lt_u32 s37, %d' % SPIN_MAX)
    a('s_cbranch_scc1 K4_POLL')
    a('s_mov_b32 s36, 1')
    a.label('K4_RDY')
    stamp(7)
    a('s_add_u32 s34, s34, 24576')
    for i in range(2):
        if i == 1: a('s_mov_b64 exec, s[52:53]')
        b = 12 + 16 * i
        for e in range(1, 15, 2):
            a('v_cvt_pk_bf16_f32 v%d, v%d, v%d' % (b + e, b + e, b + e + 1))
        for e in range(1, 11, 2):
            a('ds_write_b32 v%d, v%d offset:%d' % (6 + i, b + e, (e - 1) * 2))
        a('s_andn2_b64 exec, exec, s[%d:%d]' % (48 + 2 * i, 49 + 2 * i))
        for e in range(11, 15, 2):
            a('ds_write_b32 v%d, v%d offset:%d' % (6 + i, b + e, (e - 1) * 2))
        a('s_mov_b64 exec, -1')
    a.label('K4_GOTW')
    stamp(1)
    a('s_waitcnt vmcnt(0) lgkmcnt(0)')
    a('s_barrier')
    stamp(2)
    def rdm(ks):
        b = 12 + (ks & 1) * 4
        a('ds_read_b128 v[%d:%d], v5 offset:%d' % (b, b + 3, L_MEMF + ks * 64))
    rdm(0)
    for ks in range(20):
        if ks + 1 < 20: rdm(ks + 1)
        M = 'v[%d:%d]' % (12 + (ks & 1) * 4, 15 + (ks & 1) * 4)
        C = lambda r: ('0' if ks == 0 else 'v[%d:%d]' % (r, r + 3))
        for t in range(2):
            r = 40 + 4 * t; a('v_mfma_f32_16x16x32_bf16 v[%d:%d], %s, %s, %s' % (r, r + 3, wreg(0, t, ks), M, C(r)))
            r = 48 + 4 * t; a('v_mfma_f32_16x16x32_bf16 v[%d:%d], %s, %s, %s' % (r, r + 3, wreg(1, t, ks), M, C(r)))
    stamp(3)
    vg = []
    def vrd(ks):
        b = 12 + (ks & 1) * 4; c = 20 + (ks & 1) * 4
        return ['ds_read_b128 v[%d:%d], v5 offset:%d' % (b, b + 3, L_MEMF + ks * 64),
                'ds_read_b128 v[%d:%d], v9 offset:%d' % (c, c + 3, ks * 1024)]
    for ks in range(20):
        g = []
        if ks + 1 < 20: g += vrd(ks + 1)
        M = 'v[%d:%d]' % (12 + (ks & 1) * 4, 15 + (ks & 1) * 4)
        W1 = 'v[%d:%d]' % (20 + (ks & 1) * 4, 23 + (ks & 1) * 4)
        C = lambda r: ('0' if ks == 0 else 'v[%d:%d]' % (r, r + 3))
        g.append('v_mfma_f32_16x16x32_bf16 v[56:59], %s, %s, %s' % (M, wreg(2, 0, ks), C(56)))
        g.append('v_mfma_f32_16x16x32_bf16 v[60:63], %s, %s, %s' % (M, W1, C(60)))
        vg.append(g)
    main = []
    m_ = main.append
    for l in vrd(0): m_(l)
    for i in range(4): m_('v_cvt_pk_bf16_f32 v%d, v%d, v%d' % (80 + i, 40 + 2 * i, 41 + 2 * i))
    for i in range(4): m_('v_cvt_pk_bf16_f32 v%d, v%d, v%d' % (84 + i, 48 + 2 * i, 49 + 2 * i))
    m_('v_mfma_f32_16x16x32_bf16 v[92:95], v[84:87], v[80:83], 0')
    m_('v_mfma_f32_16x16x32_bf16 v[96:99], v[64:67], v[80:83], 0')
    m_('v_mfma_f32_16x16x32_bf16 v[100:103], v[68:71], v[80:83], 0')
    m_('s_mul_i32 s21, s3, 3072')
    m_('v_add_u32 v104, s21, v1')
    for l in main: a(l)
    for g in vg[0:2]:
        for l in g: a(l)
    for t in range(3):
        a('ds_write_b128 v104, v[%d:%d] offset:%d' % (92 + 4 * t, 95 + 4 * t, L_SX + t * 1024))
    for g in vg[2:5]:
        for l in g: a(l)
    a('s_waitcnt lgkmcnt(0)')
    a('s_barrier')
    stamp(4)
    main = []
    m_ = main.append
    for half in range(2):
        for t in range(3):
            for w in range(2):
                r = 28 + (t * 2 + w) * 4
                m_('ds_read_b128 v[%d:%d], v1 offset:%d' % (r, r + 3, L_SX + (half * 2 + w) * 3072 + t * 1024))
        for t in range(3):
            for i in range(4):
                r0 = 28 + (t * 2) * 4 + i; r1 = r0 + 4
                if half == 0: m_('v_add_f32 v%d, v%d, v%d' % (92 + 4 * t + i, r0, r1))
                else:
                    m_('v_add_f32 v%d, v%d, v%d' % (r0, r0, r1))
                    m_('v_add_f32 v%d, v%d, v%d' % (92 + 4 * t + i, 92 + 4 * t + i, r0))
    for r in range(92, 104, 2):
        tmp = 104 + ((r >> 1) & 1)
        m_('v_cvt_pk_bf16_f32 v%d, v%d, v%d' % (tmp, r, r + 1))
        m_('v_lshlrev_b32 v%d, 16, v%d' % (r, tmp))
        m_('v_and_b32 v%d, 0xffff0000, v%d' % (r + 1, tmp))
        m_('v_mul_f32 v%d, s40, v%d' % (r, r))
        m_('v_mul_f32 v%d, s40, v%d' % (r + 1, r + 1))
        m_('v_cvt_pk_bf16_f32 v%d, v%d, v%d' % (tmp, r, r + 1))
        m_('v_lshlrev_b32 v%d, 16, v%d' % (r, tmp))
        m_('v_and_b32 v%d, 0xffff0000, v%d' % (r + 1, tmp))
    m_('v_mov_b32 v104, 0xce6e6b28')
    for r in range(92, 96): m_('v_cndmask_b32 v%d, v%d, v104, s[38:39]' % (r, r))
    m_('v_max3_f32 v104, v92, v93, v94')
    m_('v_max3_f32 v105, v95, v96, v97')
    m_('v_max3_f32 v106, v98, v99, v100')
    m_('v_max3_f32 v107, v101, v102, v103')
    m_('v_max3_f32 v104, v104, v105, v106')
    m_('v_max_f32 v104, v104, v107')
    def xred(f, op, r, t):
        f('v_mov_b32 v%d, v%d' % (t, r))
        f('v_permlane32_swap_b32 v%d, v%d' % (r, t))
        f('%s v%d, v%d, v%d' % (op, r, r, t))
        f('v_mov_b32 v%d, v%d' % (t, r))
        f('v_permlane16_swap_b32 v%d, v%d' % (r, t))
        f('%s v%d, v%d, v%d' % (op, r, r, t))
    xred(m_, 'v_max_f32', 104, 105)
    m_('v_mul_f32 v104, s41, v104')
    for r in range(92, 104): m_('v_fma_f32 v%d, v%d, s41, -v104' % (r, r))
    for r in range(92, 104): m_('v_exp_f32 v%d, v%d' % (r, r))
    m_('v_add_f32 v104, v92, v93'); m_('v_add_f32 v105, v94, v95'); m_('v_add_f32 v106, v96, v97'); m_('v_add_f32 v107, v98, v99')
    m_('v_add_f32 v104, v104, v100'); m_('v_add_f32 v105, v105, v101'); m_('v_add_f32 v106, v106, v102'); m_('v_add_f32 v107, v107, v103')
    m_('v_add_f32 v104, v104, v105'); m_('v_add_f32 v106, v106, v107'); m_('v_add_f32 v104, v104, v106')
    xred(m_, 'v_add_f32', 104, 105)
    m_('v_rcp_f32 v104, v104')
    for r in range(92, 104): m_('v_mul_f32 v%d, v%d, v104' % (r, r))
    m_('v_cvt_pk_bf16_f32 v40, v92, v93'); m_('v_cvt_pk_bf16_f32 v41, v94, v95')
    for i in range(4): m_('v_cvt_pk_bf16_f32 v%d, v%d, v%d' % (44 + i, 96 + 2 * i, 97 + 2 * i))
    for l in interleave(main, vg[5:], 9): a(l)
    stamp(9)
    for t in range(5):
        a('ds_read_b128 v[%d:%d], v10 offset:%d' % (12 + 4 * t, 15 + 4 * t, t * 1024))
    for i in range(4): a('v_cvt_pk_bf16_f32 v%d, v%d, v%d' % (88 + i, 56 + 2 * i, 57 + 2 * i))
    a('s_cmp_lg_u32 s17, 0')
    a('s_cbranch_scc1 K4_NOSAVE')
    a('buffer_store_dwordx4 v[84:87], v1, s[4:7], s27 offen')
    a('buffer_store_dwordx2 v[88:89], v11, s[4:7], s28 offen')
    a('buffer_store_dwordx2 v[90:91], v11, s[4:7], s28 offen offset:512')
    a.label('K4_NOSAVE')
    a('s_add_u32 s27, s27, 131072')
    a('s_add_u32 s28, s28, 131072')
    a('s_cmp_eq_u32 s35, %d' % (nsteps - 1))
    a('s_cbranch_scc1 K4_END')
    for t in range(2):
        a('v_mfma_f32_16x16x32_bf16 v[%d:%d], v[%d:%d], v[44:47], 0' % (48 + 4 * t, 51 + 4 * t, 72 + 4 * t, 75 + 4 * t))
    for t in range(2):
        a('v_mfma_f32_16x16x16_bf16 v[%d:%d], v[%d:%d], v[40:41], v[%d:%d]' % (48 + 4 * t, 51 + 4 * t, 88 + 2 * t, 89 + 2 * t, 48 + 4 * t, 51 + 4 * t))
    for i in range(4): a('v_cvt_pk_bf16_f32 v%d, v%d, v%d' % (56 + i, 48 + 2 * i, 49 + 2 * i))
    stamp(10)
    prefetch()
    a('s_waitcnt lgkmcnt(0)')
    for t in range(5):
        a('v_mfma_f32_16x16x32_bf16 v[%d:%d], v[56:59], v[%d:%d], 0' % (32 + 4 * t, 35 + 4 * t, 12 + 4 * t, 15 + 4 * t))
    a('s_mul_i32 s21, s3, 5120')
    a('v_add_u32 v104, s21, v1')
    for t in range(5):
        a('ds_write_b128 v104, v[%d:%d] offset:%d' % (32 + 4 * t, 35 + 4 * t, L_PX + t * 1024))
    a('s_waitcnt lgkmcnt(0)')
    stamp(11)
    a('s_barrier')
    stamp(5)
    for u in range(3):
        ad = [8, 109, 0][u]
        for w in range(4):
            a('ds_read_b32 v%d, v%d offset:%d' % (40 + 4 * u + w, ad, w * 5120))
    a('v_mov_b32 v104, 1.0')
    for u in range(3):
        r = 40 + 4 * u
        a('v_add_f32 v%d, v%d, v%d' % (r, r, r + 1))
        a('v_add_f32 v%d, v%d, v%d' % (r + 2, r + 2, r + 3))
        a('v_add_f32 v%d, v%d, v%d' % (r, r, r + 2))
        a('v_cndmask_b32 v%d, 0, v%d, s[%d:%d]' % (r, r, 54 + 2 * u, 55 + 2 * u))
        a('v_cndmask_b32 v%d, v%d, v104, s[60:61]' % (r, r))
        a('buffer_atomic_add_f32 v%d, v108, s[4:7], s29 offen offset:%d' % (r, u * 1024))
    a('s_add_u32 s29, s29, 24576')
    stamp(8)
    a('s_add_u32 s35, s35, 1')
    a('s_nop 7')
    a('s_branch K4_STEP')
    a.label('K4_END')
    return kernel_text('k4_kernel', a.finalize(), 512, 64, accum=256)
```
